```python
import torch

def _softmax(x, axis=-1):
    return torch.softmax(x, dim=axis)
def _gelu(x):
    return torch.nn.functional.gelu(x, approximate="tanh")
def _silu(x):
    return torch.nn.functional.silu(x)
def _sigmoid(x):
    return torch.sigmoid(x)
def _layernorm(x, axis=-1, eps=1e-5):
    m = x.mean(dim=axis, keepdim=True)
    v = x.var(dim=axis, keepdim=True, unbiased=False)
    return (x - m) / torch.sqrt(v + eps)
def _scatter_add(tgt, idx, src, axis=0):
    return tgt.clone().index_add_(axis, idx, src)
def _segment_sum(src, seg, n):
    out = torch.zeros((n,) + src.shape[1:], dtype=src.dtype)
    return out.index_add_(0, seg, src)
def _pad(x, pw):
    flat = tuple(v for pair in reversed(pw) for v in pair)
    return torch.nn.functional.pad(x, flat)

kernel_name = 'recurrent_scan__mha_block_cached__glu_gated_bilinear__decode'

def setup_inputs():

    _w = (lambda a: (lambda t: t.to(torch.bfloat16) if t.is_floating_point() else t)(torch.as_tensor(a)))
    def _A_setup():
        B, Sq, D = 4, 1, 448
        H, Sk, Dh = 16, 4096, 256
        return {
            "x": _w((lambda *s: torch.randn(*s, dtype=torch.bfloat16) * 0.2)(B, Sq, D)),
            "k_cache": _w((lambda *s: torch.randn(*s, dtype=torch.bfloat16) * 1.6)(B, H, Sk, Dh)),
            "v_cache": _w((lambda *s: torch.randn(*s, dtype=torch.bfloat16) * 1.6)(B, H, Sk, Dh)),
            "wq": _w((lambda *s: torch.randn(*s, dtype=torch.bfloat16) * 1.6)(D, H * Dh) * (D ** -0.5)),
            "wo": _w((lambda *s: torch.randn(*s, dtype=torch.bfloat16) * 1.6)(H * Dh, D) * ((H * Dh) ** -0.5)),
        }
    _A_in = _A_setup()

    def _B_setup():
        B, S, D, F = 4, 1, 448, 1792
        return {
            "x": _w((lambda *s: torch.randn(*s, dtype=torch.bfloat16) * 0.2)(B, S, D)),
            "w_gate": _w((lambda *s: torch.randn(*s, dtype=torch.bfloat16) * 0.8)(D, F) * (D ** -0.5)),
            "w_up": _w((lambda *s: torch.randn(*s, dtype=torch.bfloat16) * 0.8)(D, F) * (D ** -0.5)),
            "w_down": _w((lambda *s: torch.randn(*s, dtype=torch.bfloat16) * 0.8)(F, D) * (F ** -0.5)),
        }
    _B_in = _B_setup()

    return {
        "A_x": _A_in["x"],
        "A_k_cache": _A_in["k_cache"],
        "A_v_cache": _A_in["v_cache"],
        "A_wq": _A_in["wq"],
        "A_wo": _A_in["wo"],
        "B_x": _B_in["x"],
        "B_w_gate": _B_in["w_gate"],
        "B_w_up": _B_in["w_up"],
        "B_w_down": _B_in["w_down"],
    }

def reference(A_x, A_k_cache, A_v_cache, A_wq, A_wo, B_x, B_w_gate, B_w_up, B_w_down):
    def _A_ref(x, k_cache, v_cache, wq, wo):
        B, Sq, D = x.shape
        H, Dh = 16, 256
        q = (lambda x, *d: x.permute(*d))((x @ wq).reshape(B, Sq, H, Dh), 0, 2, 1, 3)
        scores = torch.einsum("bhqd,bhkd->bhqk", q, k_cache) * (Dh ** -0.5)
        p = _softmax(scores, axis=-1)
        o = torch.einsum("bhqk,bhkd->bhqd", p, v_cache)
        return (lambda x, *d: x.permute(*d))(o, 0, 2, 1, 3).reshape(B, Sq, H * Dh) @ wo

    def _B_ref(x, w_gate, w_up, w_down):
        g = torch.einsum("bsd,df->bsf", x, w_gate)
        u = torch.einsum("bsd,df->bsf", x, w_up)
        h = g * u
        return torch.einsum("bsf,fd->bsd", h, w_down)

    x = A_x
    xn = _layernorm(x, axis=-1)
    s = _A_ref(xn, A_k_cache, A_v_cache, A_wq, A_wo)
    g = _silu(_B_ref(xn, B_w_gate, B_w_up, B_w_down))
    return x + s * g
```

```python
import re
TRANS=('v_exp_f32','v_log_f32','v_rcp_f32','v_rsq_f32','v_sqrt_f32','v_sin_f32','v_cos_f32')
def regs_of(tok):
    tok=tok.strip()
    tok=tok.lstrip('-')
    m=re.match(r'abs\((.*)\)$',tok)
    if m: tok=m.group(1)
    m=re.match(r'([vas])\[(\d+):(\d+)\]$',tok)
    if m: return [(m.group(1),i) for i in range(int(m.group(2)),int(m.group(3))+1)]
    m=re.match(r'([vas])(\d+)$',tok)
    if m: return [(m.group(1),int(m.group(2)))]
    if tok in('vcc','exec','m0'): return [(tok,0)]
    return []
class Emit:
    def __init__(s):
        s.L=[]; s.pos=0; s.hist=[]
        s.vm=[]; s.vm_done=0
        s.ds=[]; s.ds_done=0
        s.nops=0
    def raw(s,t): s.L.append(t)
    def comment(s,t): s.L.append('    ; '+t)
    def label(s,n): s.L.append(n+':')
    def _classify(s,text):
        parts=text.split(None,1); op=parts[0]; rest=parts[1] if len(parts)>1 else ''
        ops=[o.strip() for o in rest.split(',')]
        if ops:
            last=ops[-1].split();
            if last: ops[-1]=last[0]
        R=[regs_of(o) for o in ops]
        d=dict(op=op,kind='other',w=set(),r=set(),A=set(),B=set(),C=set(),wide=False,dpp=False,lds=False)
        flat=lambda l:set(x for y in l for x in y)
        if op.startswith('v_mfma'):
            d.update(kind='mfma',w=set(R[0]),A=set(R[1]),B=set(R[2]),C=set(R[3]),r=flat(R[1:]))
        elif op.startswith('v_'):
            d['kind']='valu'; d['w']=set(R[0]); d['r']=flat(R[1:])
            if 'permlane' in op: d['w']=flat(R[:2]); d['r']=flat(R[:2]); d['perm']=True
            if op.startswith(('v_fmac','v_dot2c','v_pk_fmac')) : d['r']|=set(R[0])
            if '_dpp' in op: d['dpp']=True; d['r']|=set(R[0])
            if op.startswith(TRANS): d['trans']=True
            if op.startswith(('v_readlane','v_readfirstlane')): d['rl']=True
            if op.startswith('v_cndmask') and len(ops)==3: d['r'].add(('vcc',0))
        elif op.startswith('ds_read') or op.startswith('ds_bpermute') or op.startswith('ds_swizzle'):
            d.update(kind='ds',w=set(R[0]),r=flat(R[1:]))
        elif op.startswith('ds_'):
            d.update(kind='ds',r=flat(R))
        elif op.startswith('buffer_load') or op.startswith('global_load'):
            if re.search(r'\blds\b',text): d.update(kind='vmem',r=flat(R)|{('m0',0)},lds=True)
            else: d.update(kind='vmem',w=set(R[0]),r=flat(R[1:]))
        elif op.startswith('buffer_') or op.startswith('global_'):
            d.update(kind='vmem',r=flat(R),store=True)
            if 'x4' in op or 'x3' in op: d['wide']=True; d['data']=set(R[0])
        elif op.startswith('s_'):
            d['kind']='salu'
            if not op.startswith(('s_cmp','s_cbranch','s_branch','s_waitcnt','s_nop','s_barrier','s_endpgm','s_sleep','s_setprio')):
                d['w']=set(R[0]); d['r']=flat(R[1:])
            else: d['r']=flat(R)
        return d
    def _need(s,p,c):
        n=0
        vg=lambda S:set(x for x in S if x[0] in 'va' and len(x[0])==1)
        sg=lambda S:set(x for x in S if x[0] in('s','vcc'))
        if p['kind']=='valu':
            pw=vg(p['w']); ps=sg(p['w'])
            if c['kind']=='mfma' and pw&c['r']: n=max(n,2)
            if c['kind']=='valu':
                if c['dpp'] and pw&c['r']: n=max(n,2)
                if c.get('perm') and pw&c['r']: n=max(n,2)
                if c.get('rl') and pw&c['r']: n=max(n,1)
                if p.get('trans') and pw&c['r']: n=max(n,1)
                if ps&c['r']: n=max(n,4 if c.get('rl') else 2)
            if p.get('trans') and c['kind'] in('ds','vmem') and pw&c['r']: n=max(n,1)
            if c['kind']=='vmem' and ps&c['r']: n=max(n,5)
            if c['kind']=='salu' and ps&c['r']: n=max(n,1)
        if p['kind']=='mfma':
            D=p['w']
            if c['kind']=='mfma':
                if D&(c['A']|c['B']): n=max(n,8)
                if D&c['C'] and (c['C']!=D or c['op']!=p['op']): n=max(n,6)
                if D&c['w'] and not (D&c['C']): n=max(n,8)
            elif c['kind'] in('valu','ds','vmem'):
                if D&(c['r']|c['w']): n=max(n,8)
            if c['kind']=='valu' and p['C']&c['w']: n=max(n,3)
        if p['kind']=='salu' and ('m0',0) in p['w'] and c['lds']: n=max(n,1)
        if p['kind']=='vmem' and p['wide'] and p['data']&c['w']: n=max(n,2)
        return n
    def i(s,text,tag=None):
        c=s._classify(text)
        need=0
        for (pp,p) in s.hist:
            k=s._need(p,c)-(s.pos-pp-1)
            need=max(need,k)
        if need>0:
            s.L.append(f'    s_nop {need-1}'); s.pos+=need; s.nops+=1
        s.L.append('    '+text)
        s.hist.append((s.pos,c)); s.hist=s.hist[-12:]
        m=re.match(r's_nop (\d+)',text)
        s.pos+= (int(m.group(1))+1) if m else 1
        if c['kind']=='vmem': s.vm.append((tag,c.get('store',False)))
        if c['kind']=='ds': s.ds.append(tag)
    def many(s,text):
        for t in text.strip().split('\n'):
            t=t.strip()
            if t: s.i(t)
    def wait_vm(s,tag):
        idx=max(k for k,(t,_) in enumerate(s.vm) if t==tag)
        if idx<s.vm_done: return
        n=sum(1 for (t,st) in s.vm[idx+1:] if not st)
        s.i(f's_waitcnt vmcnt({min(n,63)})')
        s.vm_done=idx+1
    def wait_vm_all(s):
        s.i('s_waitcnt vmcnt(0)'); s.vm_done=len(s.vm)
    def wait_ds(s,tag=None):
        if tag is None:
            if s.ds_done<len(s.ds): s.i('s_waitcnt lgkmcnt(0)'); s.ds_done=len(s.ds)
            return
        idx=max(k for k,t in enumerate(s.ds) if t==tag)
        if idx<s.ds_done: return
        n=len(s.ds)-1-idx
        s.i(f's_waitcnt lgkmcnt({min(n,15)})')
        s.ds_done=idx+1
    def outstanding(s): return len(s.vm)-s.vm_done
    def text(s): return '\n'.join(s.L)+'\n'
```

```python
import sys
from emit import Emit
NAME='recurrent_scan__mha_block_cached__glu_gated_bilinear__decode_kernel'
HDR=open('recurrent_scan__mha_block_cached__glu_gated_bilinear__decode.s.ref').read().split('; Override launch')[0]
XN=0; XNROW=960; QO=3840; MLO=4352; GU=4416; HO=8512; ORO=11584; ORROW=576; RING=14080
SLOT=1088; GRP=8*SLOT; WRING=4*GRP; LDS_BYTES=RING+4*WRING
FBASE=512<<10; MLBASE=768<<10; STBASE=1<<20
X,K,V,WQ,WO,F1,WD,OUT,DBG,WSP,WSC,WSF,DBGC=[f's[{8+4*i}:{11+4*i}]' for i in range(13)]
def srd_base(n): return int(n[2:].split(':')[0])
sB,sH,sSP,sKV='s4','s5','s6','s7'
sT,sRING,sWQ,sWO='s60','s61','s62','s63'
sF1,sWD,sT1,sT2,sY,sTMO,sC,sCY,sCF,sCML,sFI,sCB='s88','s89','s90','s91','s92','s93','s94','s95','s96','s97','s98','s99'
vL,vK,vV,vWQ,vF1,vW4='v1','v2','v3','v4','v5','v6'
vTW=['v7','v8','v9','v10']; vT4=['v11','v12']; vTV=['v13','v14']; vA='v15'; vLIN='v16'; vA2='v17'; vMAX='v18'; vCNT='v19'
def vr(a,n): return f'v[{a}:{a+n-1}]' if n>1 else f'v{a}'
def ar(a,n): return f'a[{a}:{a+n-1}]'
DPP='row_mask:0xf bank_mask:0xf'

def gen(stamps=False, wpol='', fpol='nt', name=NAME, opts=None):
    o=dict(xtiles=9) ; o.update(opts or {})
    E=Emit(); i=E.i
    nst=[0]
    def stamp():
        if not stamps: return
        i('s_memrealtime s[100:101]'); i('s_waitcnt lgkmcnt(0)'); E.ds_done=len(E.ds)
        i(f's_mov_b32 s{64+nst[0]}, s100'); nst[0]+=1
    def srd(n,p,nrec):
        b=srd_base(n)
        i(f's_mov_b32 s{b}, s{p}'); i(f's_mov_b32 s{b+1}, s{p+1}')
        if nrec is not None: i(f's_mov_b32 s{b+2}, {nrec}')
        i(f's_mov_b32 s{b+3}, 0x20000')
    def rnd(v): i(f'v_cvt_pk_bf16_f32 {v}, {v}, {v}'); i(f'v_and_b32 {v}, 0xffff0000, {v}')
    def allsum(v,t,op='add'):
        for r in (1,2,4,8): i(f'v_{op}_f32_dpp {v}, {v}, {v} row_ror:{r} {DPP}')
        xrow(v,t,op)
    def xrow(v,t,op='add'):
        i(f'v_mov_b32 {t}, {v}'); i(f'v_permlane16_swap_b32 {t}, {v}'); i(f'v_{op}_f32 {v}, {v}, {t}')
        i(f'v_mov_b32 {t}, {v}'); i(f'v_permlane32_swap_b32 {t}, {v}'); i(f'v_{op}_f32 {v}, {v}, {t}')
    def red4(a):
        i(f'v_permlane32_swap_b32 v{a}, v{a+1}'); i(f'v_permlane32_swap_b32 v{a+2}, v{a+3}')
        i(f'v_add_f32 v{a}, v{a}, v{a+1}'); i(f'v_add_f32 v{a+2}, v{a+2}, v{a+3}')
        i(f'v_permlane16_swap_b32 v{a}, v{a+2}'); i(f'v_add_f32 v{a}, v{a}, v{a+2}')
        i(f'v_add_f32_dpp v{a}, v{a}, v{a} row_ror:4 {DPP}'); i(f'v_add_f32_dpp v{a}, v{a}, v{a} row_ror:8 {DPP}')
    E.raw(HDR.rstrip('\n'))
    E.raw(f'; @launch grid=(256,1,1) block=(256,1,1) lds={LDS_BYTES}')
    E.raw(f'.amdgcn_target "amdgcn-amd-amdhsa--gfx950"\n.text\n.globl {name}\n.p2align 8\n.type {name},@function\n{name}:')
    i('s_cmp_ge_u32 s2, 256'); i('s_cbranch_scc1 L_end')
    i('s_load_dwordx16 s[64:79], s[0:1], 0'); i('s_load_dwordx8 s[80:87], s[0:1], 64')
    i('v_lshrrev_b32 v1, 6, v0'); i('v_readfirstlane_b32 s3, v1'); i(f'v_and_b32 {vL}, 63, v0')
    i(f's_and_b32 {sH}, s2, 7'); i(f's_lshl_b32 {sH}, {sH}, 1'); i(f's_bfe_u32 {sT}, s2, 0x10003'); i(f's_add_u32 {sH}, {sH}, {sT}')
    i(f's_lshr_b32 {sB}, s2, 6'); i(f's_bfe_u32 {sSP}, s2, 0x20004')
    i(f's_lshl_b32 {sKV}, {sB}, 4'); i(f's_add_u32 {sKV}, {sKV}, {sH}'); i(f's_lshl_b32 {sKV}, {sKV}, 2'); i(f's_add_u32 {sKV}, {sKV}, {sSP}')
    i(f's_lshl_b32 {sKV}, {sKV}, 19'); i(f's_lshl_b32 {sT}, s3, 12'); i(f's_add_u32 {sKV}, {sKV}, {sT}')
    i(f's_mul_i32 {sRING}, s3, {WRING}'); i(f's_add_u32 {sRING}, {sRING}, {RING}')
    i(f's_lshl_b32 {sWQ}, {sH}, 9'); i(f's_lshl_b32 {sT}, s3, 7'); i(f's_add_u32 {sWQ}, {sWQ}, {sT}')
    i(f'v_lshlrev_b32 {vLIN}, 4, {vL}')
    i(f'v_and_b32 v20, 7, {vL}'); i(f'v_lshrrev_b32 v21, 3, {vL}')
    i(f'v_lshlrev_b32 {vK}, 9, v20'); i(f'v_lshl_add_u32 {vK}, v21, 4, {vK}')
    i('v_and_b32 v22, 3, v21'); i('v_lshrrev_b32 v23, 2, v21'); i('v_lshl_add_u32 v22, v23, 3, v22')
    i('v_lshrrev_b32 v23, 1, v21'); i('v_lshlrev_b32 v23, 1, v23'); i('v_xor_b32 v23, v23, v20'); i('v_lshlrev_b32 v23, 4, v23')
    i(f'v_lshl_add_u32 {vWQ}, v22, 13, v23')
    i(f'v_mul_u32_u24 {vF1}, 3584, v22'); i(f'v_add_u32 {vF1}, {vF1}, v23')
    i(f'v_cmp_gt_u32 vcc, 56, {vL}'); i('v_bfrev_b32 v24, 1'); i(f'v_cndmask_b32 v24, v24, {vLIN}, vcc')
    i(f's_add_u32 {sT1}, {sB}, s3'); i(f's_and_b32 {sT1}, {sT1}, 3'); i(f's_mul_i32 {sT1}, {sT1}, 896')
    i('s_waitcnt lgkmcnt(0)')
    srd(X,64,3584); srd(K,66,0x8000000); srd(WQ,70,448*4096*2)
    i(f'buffer_load_dwordx4 v[20:23], v24, {X}, {sT1} offen',tag='x')
    groups=[('wq',g) for g in range(7)]+[('f1',g) for g in range(4)]+[('wo',g) for g in range(8)]+[('wd',g) for g in range(2)]+[('v',g) for g in range(16)]
    gidx={g:n for n,g in enumerate(groups)}
    def gbase(g): return (gidx[g]%4)*GRP
    def dma(voff,srdn,sbase,memoff,ldsoff,pol,tag):
        i(f's_add_u32 m0, {sRING}, {ldsoff}'); i(f's_add_u32 {sT}, {sbase}, {memoff}')
        i(f'buffer_load_dwordx4 {voff}, {srdn}, {sT} offen {pol} lds'.replace('  ',' '),tag=tag)
    RB=[0,16,4,20]
    def issue_kstep8(g,half):
        kind,n=g; s=2*n+half
        voff,srdn,sb,stride,pol=(vWQ,WQ,sWQ,8192,wpol) if kind=='wq' else (vF1,F1,sF1,3584,fpol)
        for sl in range(4): dma(voff,srdn,sb,(32*s+RB[sl])*stride,gbase(g)+(half*4+sl)*SLOT,pol,(kind,s))
    def issue_group(g):
        kind,n=g
        if kind=='wq': issue_kstep8(g,0); issue_kstep8(g,1)
        elif kind=='f1':
            issue_kstep8(g,0)
            if n<3: issue_kstep8(g,1)
        elif kind=='wo':
            for e in range(8): dma(vW4,WO,sWO,(128*(n//4)+16*e+4*(n%4))*896,gbase(g)+e*SLOT,wpol,g)
        elif kind=='wd':
            for e in range(8): dma(vW4,WD,sWD,(32*n+4*e)*896,gbase(g)+e*SLOT,fpol,g)
        elif kind=='v':
            for e in range(8): dma(vV,V,sKV,(2*n+e//4)*16384+(e%4)*1024,gbase(g)+e*SLOT,'nt',g)
    XT=o['xtiles']
    areas=[32,64,96,128]
    kreg={}; kissue={}
    free=[];
    for t in range(4): kreg[t]=areas[t]
    nxt=4
    for step in range(16):
        a=kreg[step]
        kissue[step]=[]
        if a==128 and nxt>XT: continue
        if nxt<16: kreg[nxt]=a; kissue[step].append(nxt); nxt+=1
    def issue_octet(T,oc):
        i(f's_add_u32 {sT}, {sKV}, {(2*T+oc)*16384}')
        for s in range(4):
            i(f'buffer_load_dwordx4 {vr(kreg[T]+oc*16+s*4,4)}, {vK}, {K}, {sT} offen offset:{s*128} nt',tag=('k',T))
    oc=0
    for s in range(8):
        issue_kstep8(('wq',s//2),s%2)
        if oc<6: issue_octet(oc//2,oc%2); oc+=1
    srd(V,68,0x8000000); srd(WO,72,4096*448*2); srd(OUT,82,3584); srd(DBG,84,256); srd(WSP,86,4<<20)
    i('s_cmp_lt_u32 s2, 32'); i(f's_cselect_b32 s{srd_base(WSC)+2}, {4<<20}, 0'); i(f's_cselect_b32 s{srd_base(DBGC)+2}, 256, 0')
    srd(WSC,86,None); srd(DBGC,84,None)
    i(f's_sub_u32 {sFI}, s2, 32'); i(f's_cmp_lt_u32 {sFI}, 28'); i(f's_cselect_b32 {sFI}, {sFI}, 0')
    i(f's_cselect_b32 s{srd_base(F1)+2}, {448*1792*2}, 0'); i(f's_cselect_b32 s{srd_base(WD)+2}, {448*1792*2}, 0'); i(f's_cselect_b32 s{srd_base(WSF)+2}, {4<<20}, 0')
    srd(WD,80,None); srd(WSF,86,None)
    i('s_cmp_lt_u32 s3, 2'); i(f's_cselect_b32 s{srd_base(F1)}, s76, s78'); i(f's_cselect_b32 s{srd_base(F1)+1}, s77, s79'); i(f's_mov_b32 s{srd_base(F1)+3}, 0x20000')
    i(f's_and_b32 {sT1}, s3, 1'); i(f's_mul_i32 {sF1}, {sT1}, {224*3584}'); i(f's_lshl_b32 {sT}, {sFI}, 7'); i(f's_add_u32 {sF1}, {sF1}, {sT}')
    i(f's_mul_i32 {sT2}, s3, 224'); i(f's_mul_i32 {sWO}, {sH}, {256*896}'); i(f's_add_u32 {sWO}, {sWO}, {sT2}')
    i(f's_mul_i32 {sWD}, {sFI}, {64*896}'); i(f's_add_u32 {sWD}, {sWD}, {sT2}')
    i(f's_lshl_b32 {sY}, {sB}, 2'); i(f's_add_u32 {sY}, {sY}, s3'); i(f's_lshl_b32 {sY}, {sY}, 15')
    i(f's_lshl_b32 {sT}, {sH}, 2'); i(f's_add_u32 {sT}, {sT}, {sSP}'); i(f's_lshl_b32 {sT}, {sT}, 6'); i(f's_add_u32 {sY}, {sY}, {sT}')
    i(f's_and_b32 {sT}, s2, 31'); i(f's_lshr_b32 {sCB}, {sT}, 3'); i(f's_lshl_b32 {sT}, {sT}, 2'); i(f's_add_u32 {sT}, {sT}, s3')
    i(f's_lshl_b32 {sCY}, {sT}, 12'); i(f's_lshl_b32 {sCF}, {sT}, 11'); i(f's_add_u32 {sCF}, {sCF}, {FBASE}')
    i(f's_lshl_b32 {sCML}, {sCB}, 9'); i(f's_add_u32 {sCML}, {sCML}, {MLBASE}')
    i(f's_mov_b32 {sC}, 0x3db8aa3b')
    stamp()
    i(f'v_lshrrev_b32 v25, 4, {vL}'); i(f'v_bfe_u32 v26, {vL}, 2, 2'); i(f'v_and_b32 v27, 3, {vL}')
    i(f'v_lshrrev_b32 v28, 5, {vL}'); i('v_lshlrev_b32 v28, 5, v28'); i(f'v_xor_b32 {vV}, v28, {vLIN}')
    i('v_and_b32 v28, 1, v25'); i('v_lshlrev_b32 v29, 1, v28'); i(f'v_and_b32 v30, 15, {vL}'); i('v_xor_b32 v29, v29, v30')
    i('v_cmp_gt_u32 vcc, 14, v29'); i('v_lshlrev_b32 v29, 4, v29'); i(f'v_mul_u32_u24 {vW4}, 896, v25'); i(f'v_add_u32 {vW4}, {vW4}, v29')
    i('v_bfrev_b32 v29, 1'); i(f'v_cndmask_b32 {vW4}, v29, {vW4}, vcc')
    i('v_lshl_add_u32 v29, v28, 2, v26')
    i('v_lshrrev_b32 v30, 1, v25'); i(f'v_mul_u32_u24 v30, {SLOT}, v30'); i('v_lshl_add_u32 v30, v29, 7, v30'); i('v_lshl_add_u32 v30, v27, 3, v30')
    i(f'v_add_u32 v30, {sRING}, v30'); i('v_lshrrev_b32 v29, 1, v29')
    for t in range(4):
        i(f'v_xor_b32 v31, {t}, v29'); i(f'v_lshl_add_u32 {vTW[t]}, v31, 5, v30')
    i(f'v_mul_u32_u24 v30, {SLOT}, v26'); i('v_lshl_add_u32 v30, v25, 8, v30'); i('v_lshl_add_u32 v30, v27, 3, v30'); i(f'v_add_u32 v30, {sRING}, v30')
    i('v_lshlrev_b32 v31, 5, v28'); i(f'v_add_u32 {vT4[0]}, v30, v31'); i(f'v_sub_u32 {vT4[1]}, v30, v31')
    i('v_lshrrev_b32 v30, 1, v26'); i('v_lshl_add_u32 v30, v25, 1, v30'); i(f'v_mul_u32_u24 v30, {SLOT}, v30'); i('v_and_b32 v31, 1, v26')
    i('v_lshl_add_u32 v30, v31, 9, v30'); i('v_lshl_add_u32 v30, v27, 3, v30'); i(f'v_add_u32 v30, {sRING}, v30')
    i('v_lshlrev_b32 v31, 5, v31'); i(f'v_add_u32 {vTV[0]}, v30, v31'); i(f'v_sub_u32 {vTV[1]}, v30, v31')
    i(f'v_mul_u32_u24 {vA}, {XNROW}, v27'); i(f'v_lshl_add_u32 {vA}, v25, 4, {vA}')
    i(f's_mul_i32 {sT1}, {sT1}, 448'); i(f'v_add_u32 {vA2}, {sT1}, {vA}')
    i(f'v_mov_b32 {vMAX}, 0xff800000')
    E.wait_vm('x')
    stamp()
    for k in range(4):
        i(f'v_lshlrev_b32 v{232+2*k}, 16, v{20+k}'); i(f'v_and_b32 v{233+2*k}, 0xffff0000, v{20+k}')
    i('v_add_f32 v240, v232, v233'); i('v_add_f32 v241, v234, v235'); i('v_add_f32 v242, v236, v237'); i('v_add_f32 v243, v238, v239')
    i('v_add_f32 v240, v240, v241'); i('v_add_f32 v242, v242, v243'); i('v_add_f32 v240, v240, v242')
    allsum('v240','v241')
    i('v_mul_f32 v240, 0x3b124925, v240')
    i('v_sub_f32 v242, v232, v240'); i('v_mul_f32 v243, v242, v242')
    for k in range(1,8):
        i(f'v_sub_f32 v242, v{232+k}, v240'); i('v_fmac_f32 v243, v242, v242')
    i(f'v_cmp_gt_u32 vcc, 56, {vL}'); i('v_cndmask_b32 v243, 0, v243, vcc')
    allsum('v243','v241')
    i('v_mul_f32 v243, 0x3b124925, v243')
    rnd('v240'); rnd('v243'); i('v_add_f32 v243, 0x3727c5ac, v243'); rnd('v243'); i('v_sqrt_f32 v243, v243'); rnd('v243'); i('v_rcp_f32 v244, v243')
    for k in range(8): i(f'v_sub_f32 v{232+k}, v{232+k}, v240')
    for k in range(4):
        i(f'v_cvt_pk_bf16_f32 v{20+k}, v{232+2*k}, v{233+2*k}')
        i(f'v_lshlrev_b32 v{232+2*k}, 16, v{20+k}'); i(f'v_and_b32 v{233+2*k}, 0xffff0000, v{20+k}')
    for k in range(8):
        i(f'v_mul_f32 v245, v{232+k}, v244'); i(f'v_fma_f32 v246, -v245, v243, v{232+k}'); i(f'v_fma_f32 v{232+k}, v246, v244, v245')
    for k in range(4): i(f'v_cvt_pk_bf16_f32 v{20+k}, v{232+2*k}, v{233+2*k}')
    i(f's_mul_i32 {sT1}, s3, {XNROW}'); i(f'v_add_u32 v24, {sT1}, {vLIN}')
    i('s_mov_b32 exec_hi, 0x00ffffff'); i(f'ds_write_b128 v24, v[20:23] offset:{XN}'); i('s_mov_b32 exec_hi, -1')
    issue_octet(3,0); issue_octet(3,1)
    E.wait_ds(); i('s_barrier')
    stamp()
    def reads8(g,half,areg,aoff,tmp,atmp):
        kind,n=g; s=2*n+half
        E.wait_vm((kind,s))
        i(f'ds_read_b128 {vr(atmp,4)}, {areg} offset:{XN+aoff}',tag=('r8',kind,s))
        for t in range(4):
            for hh in range(2):
                i(f'ds_read_b64_tr_b16 {vr(tmp+4*t+2*hh,2)}, {vTW[t]} offset:{gbase(g)+(half*4+2*hh)*SLOT}',tag=('r8',kind,s))
    def mfma8(kind,s,tmp,atmp,acc,first):
        E.wait_ds(('r8',kind,s))
        for t in range(4):
            i(f'v_mfma_f32_16x16x32_bf16 {vr(acc+4*t,4)}, {vr(atmp,4)}, {vr(tmp+4*t,4)}, {"0" if first else vr(acc+4*t,4)}')
    QACC=160
    for s in range(15):
        if s<14: reads8(('wq',s//2),s%2,vA,s*64,184+16*(s%2),248+4*(s%2))
        if s>0:
            mfma8('wq',s-1,184+16*((s-1)%2),248+4*((s-1)%2),QACC,s==1)
            if (s-1)%2==1:
                n=gidx[('wq',(s-1)//2)]+4
                if groups[n][0]=='wq' : issue_group(groups[n])
    i(f's_lshl_b32 {sT1}, s3, 7'); i(f'v_lshlrev_b32 v24, 1, {vL}'); i(f'v_add_u32 v24, {sT1}, v24')
    i(f'v_cvt_pk_bf16_f32 v20, v{QACC}, v{QACC+4}'); i(f'v_cvt_pk_bf16_f32 v21, v{QACC+8}, v{QACC+12}')
    i('s_mov_b64 exec, 0xffff')
    i(f'ds_write_b16 v24, v20 offset:{QO}'); i(f'ds_write_b16_d16_hi v24, v20 offset:{QO+32}')
    i(f'ds_write_b16 v24, v21 offset:{QO+64}'); i(f'ds_write_b16_d16_hi v24, v21 offset:{QO+96}')
    i('s_mov_b64 exec, -1')
    i(f'v_lshrrev_b32 v24, 3, {vL}'); i('v_lshlrev_b32 v24, 4, v24')
    E.wait_ds(); i('s_barrier')
    for s in range(4): i(f'ds_read_b128 {ar(224+4*s,4)}, v24 offset:{QO+s*128}',tag='qf')
    stamp()
    side=groups[7:21]
    E.wait_ds('qf')
    SC=184; WDR=128
    def post(T):
        a=216+8*(T%2)
        for r in range(4): i(f'v_permlane32_swap_b32 v{a+r}, v{a+4+r}')
        for r in range(4): i(f'v_add_f32_dpp v{a+r}, v{a+4+r}, v{a+r} row_ror:8 {DPP}')
        i(f'v_max3_f32 {vMAX}, v{a}, v{a+1}, {vMAX}'); i(f'v_max3_f32 {vMAX}, v{a+2}, v{a+3}, {vMAX}')
        i(f'v_cvt_pk_bf16_f32 v{SC+2*T}, v{a}, v{a+1}'); i(f'v_cvt_pk_bf16_f32 v{SC+2*T+1}, v{a+2}, v{a+3}')
    def consume_side(g):
        kind,n=g
        if kind=='f1':
            for half in range(2 if n<3 else 1):
                s=2*n+half
                reads8(g,half,vA2,s*64,232,248)
                mfma8('f1',s,232,248,QACC,s==0)
            if n==3:
                i(f's_lshl_b32 {sT1}, s3, 10'); i(f'v_add_u32 v24, {sT1}, {vLIN}')
                i('s_mov_b64 exec, 0xffff')
                for t in range(4): i(f'ds_write_b128 v24, {vr(QACC+4*t,4)} offset:{GU+t*256}')
                i('s_mov_b64 exec, -1')
        else:
            E.wait_vm(g)
            for t in range(7):
                for hh in range(2):
                    dst=ar((n*7+t)*4+2*hh,2) if kind=='wo' else vr(WDR+(n*7+t)*4+2*hh,2)
                    i(f'ds_read_b64_tr_b16 {dst}, {vT4[t%2]} offset:{gbase(g)+hh*4*SLOT+t*32}',tag=('r4',g))
        E.wait_ds()
    LAG=o.get('lag',2)
    for step in range(16):
        E.wait_vm(('k',step))
        a=216+8*(step%2)
        for s in range(4):
            for oc in range(2):
                acc=vr(a+4*oc,4)
                i(f'v_mfma_f32_16x16x32_bf16 {acc}, {vr(kreg[step]+oc*16+s*4,4)}, {ar(224+4*s,4)}, {"0" if s==0 else acc}')
        for T in kissue[step]: issue_octet(T,0); issue_octet(T,1)
        if step==0:
            for r in range(4): i(f'v_mov_b32 v{20+r}, -1')
            for k in range(4): i(f'buffer_store_dwordx4 v[20:23], {vLIN}, {WSC}, {sCY} offen offset:{k*1024} sc1',tag='clr')
            i(f'buffer_store_dwordx4 v[20:23], {vLIN}, {WSC}, {sCF} offen sc1',tag='clr')
            i(f'v_and_b32 v24, 0x1ff, {vLIN}')
            i(f'buffer_store_dwordx4 v[20:23], v24, {WSC}, {sCML} offen sc1',tag='clr')
            i(f'v_cmp_gt_u32 vcc, 48, {vL}')
            for r in range(4): i(f'v_cndmask_b32 v{24+r}, 0, v{20+r}, vcc')
            i(f'buffer_store_dwordx4 v[24:27], {vLIN}, {WSC}, {sCF} offen offset:1024 sc1',tag='clr')
        if step<LAG:
            for k in range(4//LAG): issue_group(side[step*(4//LAG)+k])
        else:
            n=step-LAG
            consume_side(side[n])
            if n+4<14: issue_group(side[n+4])
            else: issue_group(('v',n+4-14))
        if step==8:
            i('v_mov_b32 v20, 1'); i('s_mov_b64 exec, 1')
            i(f'buffer_atomic_add v20, off, {DBGC}, 0 sc1',tag='atom'); i('s_mov_b64 exec, -1')
        if step==14: i(f'buffer_load_dword {vCNT}, off, {DBG}, 0 sc1',tag='cnt')
        post(step)
    stamp()
    xrow(vMAX,'v20','max'); rnd(vMAX); i(f'v_mul_f32 {vMAX}, {sC}, {vMAX}')
    EE=32
    for k in range(32):
        i(f'v_lshlrev_b32 v{EE+2*k}, 16, v{SC+k}'); i(f'v_and_b32 v{EE+2*k+1}, 0xffff0000, v{SC+k}')
        i(f'v_fma_f32 v{EE+2*k}, v{EE+2*k}, {sC}, -{vMAX}'); i(f'v_fma_f32 v{EE+2*k+1}, v{EE+2*k+1}, {sC}, -{vMAX}')
        i(f'v_exp_f32 v{EE+2*k}, v{EE+2*k}'); i(f'v_exp_f32 v{EE+2*k+1}, v{EE+2*k+1}')
        if k==1: i(f'v_pk_add_f32 v[20:21], {vr(EE,2)}, 0')
        if k>=2: i(f'v_pk_add_f32 v[20:21], v[20:21], {vr(EE+2*(k-1),2)}')
    i(f'v_pk_add_f32 v[20:21], v[20:21], {vr(EE+62,2)}')
    i('v_add_f32 v21, v20, v21'); xrow('v21','v22'); i(f'v_mov_b32 v20, {vMAX}')
    i(f's_lshl_b32 {sT1}, s3, 3'); i(f'v_mov_b32 v22, {sT1}')
    i('s_mov_b64 exec, 1'); i(f'ds_write_b64 v22, v[20:21] offset:{MLO}'); i('s_mov_b64 exec, -1')
    i('v_mov_b32 v22, 0')
    E.wait_ds(); i('s_barrier')
    i(f'ds_read_b128 v[24:27], v22 offset:{MLO}'); i(f'ds_read_b128 v[28:31], v22 offset:{MLO+16}')
    E.wait_ds()
    i('v_max3_f32 v20, v24, v26, v28'); i('v_max_f32 v20, v20, v30')
    i(f'v_sub_f32 v22, {vMAX}, v20'); i('v_exp_f32 v22, v22')
    for k in (24,26,28,30): i(f'v_sub_f32 v{k}, v{k}, v20'); i(f'v_exp_f32 v{k}, v{k}')
    i('v_mov_b32 v23, v22')
    i('v_mul_f32 v21, v24, v25'); i('v_fmac_f32 v21, v26, v27'); i('v_fmac_f32 v21, v28, v29'); i('v_fmac_f32 v21, v30, v31')
    for k in range(32):
        i(f'v_pk_mul_f32 {vr(EE+2*k,2)}, {vr(EE+2*k,2)}, v[22:23]')
        i(f'v_cvt_pk_bf16_f32 v{SC+k}, v{EE+2*k}, v{EE+2*k+1}')
    stamp()
    PV=32; TV=96
    def vstep(n):
        g=('v',n)
        E.wait_vm(g)
        for t in range(16):
            i(f'ds_read_b64_tr_b16 {vr(TV+2*t,2)}, {vTV[t%2]} offset:{gbase(g)+t*32}',tag=('rv',n,t))
        for t in range(16):
            if t%4==0: E.wait_ds(('rv',n,t+3))
            if t==12 and n+4<16: issue_group(('v',n+4))
            acc=vr(PV+4*t,4)
            i(f'v_mfma_f32_16x16x16_bf16 {acc}, {vr(SC+2*n,2)}, {vr(TV+2*t,2)}, {"0" if n==0 else acc}')
    vstep(0); vstep(1)
    E.wait_vm('cnt')
    i(f's_mov_b32 {sTMO}, 0x40000')
    E.label('L_cnt')
    i(f'v_readfirstlane_b32 {sT1}, {vCNT}'); i(f's_cmp_ge_u32 {sT1}, 128'); i('s_cbranch_scc1 L_cnt_ok')
    i(f's_sub_u32 {sTMO}, {sTMO}, 1'); i('s_cbranch_scc1 L_cnt_ok')
    E.raw(f'    s_sleep 4\n    buffer_load_dword {vCNT}, off, {DBG}, 0 sc1\n    s_waitcnt vmcnt(0)\n    s_branch L_cnt')
    E.label('L_cnt_ok')
    i(f's_lshr_b32 {sT1}, {sKV}, 19'); i(f's_lshl_b32 {sT1}, {sT1}, 3'); i(f's_add_u32 {sT1}, {sT1}, {MLBASE}')
    i('s_mov_b64 exec, 1'); i(f'buffer_store_dwordx2 v[20:21], off, {WSP}, {sT1} sc1',tag='ml'); i('s_mov_b64 exec, -1')
    vstep(2)
    for k in range(4): i(f'ds_read_b128 {vr(216+4*k,4)}, {vLIN} offset:{GU+k*1024}',tag='gu')
    i(f'v_lshrrev_b32 v20, 5, {vL}'); i('v_lshlrev_b32 v20, 6, v20'); i(f'v_and_b32 v21, 3, {vL}'); i('v_lshl_add_u32 v20, v21, 4, v20')
    i(f'v_bfe_u32 v22, {vL}, 2, 3'); i('v_lshl_add_u32 v20, v22, 1, v20'); i(f's_mul_i32 {sT1}, s3, 768'); i(f'v_add_u32 v20, {sT1}, v20')
    i('v_mul_u32_u24 v21, 192, v21'); i(f'v_lshrrev_b32 v22, 4, {vL}'); i('v_lshl_add_u32 v21, v22, 4, v21'); i(f'v_add_u32 v21, {sT1}, v21')
    E.wait_ds('gu')
    for r in range(4):
        i(f'v_add_f32 v{216+r}, v{216+r}, v{220+r}'); i(f'v_add_f32 v{224+r}, v{224+r}, v{228+r}')
        rnd(f'v{216+r}'); rnd(f'v{224+r}'); i(f'v_mul_f32 v{216+r}, v{216+r}, v{224+r}')
    i('v_cvt_pk_bf16_f32 v216, v216, v217'); i('v_cvt_pk_bf16_f32 v217, v218, v219')
    i(f'ds_write_b16 v20, v216 offset:{HO}'); i(f'ds_write_b16_d16_hi v20, v216 offset:{HO+192}')
    i(f'ds_write_b16 v20, v217 offset:{HO+384}'); i(f'ds_write_b16_d16_hi v20, v217 offset:{HO+576}')
    E.wait_ds()
    i(f'ds_read_b128 v[244:247], v21 offset:{HO}'); i(f'ds_read_b128 v[248:251], v21 offset:{HO+64}')
    E.wait_ds()
    FA=216
    for s in range(2):
        for t in range(7):
            acc=vr(FA+4*t,4)
            i(f'v_mfma_f32_16x16x32_bf16 {acc}, {vr(244+4*s,4)}, {vr(WDR+(s*7+t)*4,4)}, {"0" if s==0 else acc}')
    vYO,vFO='v2','v4'
    i(f'v_bfe_u32 v20, {vL}, 2, 2'); i(f'v_and_b32 v21, 3, {vL}'); i('v_lshlrev_b32 v21, 4, v21')
    i(f'v_lshl_add_u32 {vYO}, v20, 12, v21'); i(f'v_lshl_add_u32 {vFO}, v20, 11, v21')
    for r in range(4):
        for hf in range(2):
            d=128+(r*2+hf)*4
            for tt in range(4):
                t=4*hf+tt
                i(f'v_mov_b32 v{d+tt}, '+(f'v{FA+4*t+r}' if t<7 else '0'))
    i('s_mov_b64 exec, 0xffff')
    for r in range(4):
        i(f's_add_u32 {sT1}, {sB}, {r}'); i(f's_and_b32 {sT1}, {sT1}, 3'); i(f's_lshl_b32 {sT1}, {sT1}, 2'); i(f's_add_u32 {sT1}, {sT1}, s3')
        i(f's_lshl_b32 {sT1}, {sT1}, 14'); i(f's_lshl_b32 {sT2}, {sFI}, 6'); i(f's_add_u32 {sT1}, {sT1}, {sT2}'); i(f's_add_u32 {sT1}, {sT1}, {FBASE}')
        i(f'buffer_store_dwordx4 {vr(128+r*8,4)}, {vFO}, {WSF}, {sT1} offen sc1',tag='fst')
        i(f's_add_u32 {sT1}, {sT1}, 8192')
        i(f'buffer_store_dwordx4 {vr(128+r*8+4,4)}, {vFO}, {WSF}, {sT1} offen sc1',tag='fst')
    i('s_mov_b64 exec, -1')
    for n in range(3,9): vstep(n)
    vML,vXO='v5','v6'
    i(f'v_lshrrev_b32 {vML}, 2, {vL}'); i(f'v_lshlrev_b32 {vML}, 3, {vML}')
    i(f'v_bfe_u32 v20, {vL}, 4, 1'); i(f'v_bfe_u32 v21, {vL}, 5, 1'); i('v_lshl_add_u32 v20, v20, 1, v21')
    i(f's_bfe_u32 {sT1}, s2, 0x20001'); i(f's_mul_i32 {sT1}, {sT1}, 112'); i(f's_and_b32 {sT2}, s2, 1'); i(f's_lshl_b32 {sT}, {sT2}, 6'); i(f's_add_u32 {sT1}, {sT1}, {sT}')
    i(f's_lshl_b32 {sT}, s3, 2'); i(f's_add_u32 {sT1}, {sT1}, {sT}'); i(f's_mul_i32 {sT}, {sCB}, 448'); i(f's_add_u32 {sT1}, {sT1}, {sT}')
    i(f'v_and_b32 v21, 15, {vL}'); i(f'v_lshl_add_u32 {vXO}, v20, 4, v21'); i(f'v_add_u32 {vXO}, {sT1}, {vXO}'); i(f'v_lshlrev_b32 {vXO}, 1, {vXO}')
    i(f'v_add_u32 v20, {sT2}, v20'); i('v_lshrrev_b32 v20, 2, v20'); i('v_lshl_add_u32 v21, v20, 4, v21')
    i('v_cmp_gt_u32 vcc, 4, v21'); i('v_bfrev_b32 v20, 1'); i(f'v_cndmask_b32 {vXO}, v20, {vXO}, vcc')
    def preloads(ii):
        for k in range(4): ii(f'buffer_load_dwordx2 {vr(160+2*k,2)}, {vML}, {WSC}, {sCML} offen offset:{k*128} sc1')
        for k in range(2): ii(f'buffer_load_dwordx4 {vr(168+4*k,4)}, {vLIN}, {WSC}, {sCF} offen offset:{k*1024} sc1')
    preloads(lambda t:i(t,tag='pre'))
    i(f'buffer_load_ushort v176, {vXO}, {X}, 0 offen',tag='pre')
    vstep(9); vstep(10)
    E.wait_vm('pre')
    i('s_cmp_ge_u32 s2, 32'); i('s_cbranch_scc1 L_pre_done')
    i(f's_mov_b32 {sTMO}, 0x40000')
    E.label('L_pre')
    WT=178
    for k in range(4):
        m,l=160+2*k,161+2*k
        i(f'v_max_f32_dpp v20, v{m}, v{m} row_ror:4 {DPP}'); i(f'v_max_f32_dpp v20, v20, v20 row_ror:8 {DPP}')
        i(f'v_sub_f32 v20, v{m}, v20'); i('v_exp_f32 v20, v20'); i(f'v_mul_f32 v21, v20, v{l}')
        i(f'v_add_f32_dpp v21, v21, v21 row_ror:4 {DPP}'); i(f'v_add_f32_dpp v21, v21, v21 row_ror:8 {DPP}')
        i('v_rcp_f32 v21, v21'); i(f'v_mul_f32 v{WT+k}, v20, v21')
    for r in range(4): i(f'v_add_f32 v{24+r}, v{168+r}, v{172+r}')
    red4(24)
    i(f'v_add_f32 v20, v{WT}, v{WT+1}'); i(f'v_add_f32 v21, v{WT+2}, v{WT+3}'); i('v_add_f32 v20, v20, v21')
    i('v_cmp_u_f32 vcc, v20, v24'); i('s_cmp_eq_u64 vcc, 0'); i('s_cbranch_scc1 L_pre_ok')
    i(f's_sub_u32 {sTMO}, {sTMO}, 1'); i('s_cbranch_scc1 L_pre_ok')
    E.raw('    s_sleep 4'); preloads(lambda t:E.raw('    '+t)); E.raw('    s_waitcnt vmcnt(0)\n    s_branch L_pre')
    E.label('L_pre_ok')
    rnd('v24'); i('v_mul_f32 v20, 0xbfb8aa3b, v24'); i('v_exp_f32 v20, v20'); i('v_add_f32 v20, 1.0, v20'); i('v_rcp_f32 v20, v20')
    i(f'v_mul_f32 v{WT+4}, v24, v20'); rnd(f'v{WT+4}'); i('v_lshlrev_b32 v176, 16, v176')
    E.label('L_pre_done')
    i('s_nop 1')
    vOW,vOA='v7','v8'
    i(f's_mul_i32 {sT1}, s3, {ORROW}'); i(f'v_add_u32 {vOW}, {sT1}, {vLIN}')
    i(f'v_and_b32 v20, 3, {vL}'); i(f'v_mul_u32_u24 {vOA}, {ORROW}, v20'); i(f'v_lshrrev_b32 v20, 4, {vL}'); i(f'v_lshl_add_u32 {vOA}, v20, 4, {vOA}')
    i('v_mov_b32 v31, 0'); i(f's_add_u32 {sT2}, {sY}, 16384')
    for n in range(11,16):
        if n==15: stamp()
        vstep(n)
    stamp()
    for k in range(8): i(f'v_cvt_pk_bf16_f32 v{128+k}, v{PV+8*k}, v{PV+8*k+4}')
    i('s_mov_b64 exec, 0xffff')
    i(f'ds_write_b128 {vOW}, v[128:131] offset:{ORO}'); i(f'ds_write_b128 {vOW}, v[132:135] offset:{ORO+256}')
    i('s_mov_b64 exec, -1')
    E.wait_ds(); i('s_barrier')
    for s in range(8): i(f'ds_read_b128 {vr(96+4*s,4)}, {vOA} offset:{ORO+s*64}',tag=('oa',s))
    for s in range(8):
        E.wait_ds(('oa',s))
        for t in range(7):
            acc=vr(FA+4*t,4)
            i(f'v_mfma_f32_16x16x32_bf16 {acc}, {vr(96+4*s,4)}, {ar((s*7+t)*4,4)}, {"0" if s==0 else acc}')
    for t in range(7): i(f'v_pk_add_f32 {vr(FA+4*t,2)}, {vr(FA+4*t,2)}, {vr(FA+4*t+2,2)}')
    for t in range(7): i(f'v_add_f32 v{24+t}, v{FA+4*t}, v{FA+4*t+1}')
    i('s_mov_b64 exec, 0xffff')
    i(f'buffer_store_dwordx4 v[24:27], {vYO}, {WSP}, {sY} offen sc1',tag='y')
    i(f'buffer_store_dwordx4 v[28:31], {vYO}, {WSP}, {sT2} offen sc1',tag='y')
    i('s_mov_b64 exec, -1')
    stamp()
    i('s_cmp_ge_u32 s2, 32'); i('s_cbranch_scc1 L_fin')
    i(f's_mov_b32 {sTMO}, 0x40000')
    E.label('L_poll')
    for k in range(4): i(f'buffer_load_dwordx4 {vr(128+4*k,4)}, {vLIN}, {WSC}, {sCY} offen offset:{k*1024} sc1',tag=('yl',k))
    for k in range(4):
        E.wait_vm(('yl',k))
        for r in range(4):
            if k==0: i(f'v_mul_f32 v{144+r}, v{WT}, v{128+r}')
            else: i(f'v_fmac_f32 v{144+r}, v{WT+k}, v{128+4*k+r}')
    red4(144)
    i('v_cmp_u_f32 vcc, v144, v144'); i('s_cmp_eq_u64 vcc, 0'); i('s_cbranch_scc1 L_poll_ok')
    i(f's_sub_u32 {sTMO}, {sTMO}, 1'); i('s_cbranch_scc0 L_poll')
    E.label('L_poll_ok')
    rnd('v144'); i(f'v_mul_f32 v144, v144, v{WT+4}'); rnd('v144'); i('v_add_f32 v144, v144, v176'); i('v_cvt_pk_bf16_f32 v144, v144, v144')
    i(f'buffer_store_short v144, {vXO}, {OUT}, 0 offen')
    E.label('L_fin')
    stamp()
    if stamps:
        i(f's_lshl_b32 {sT1}, s2, 2'); i(f's_add_u32 {sT1}, {sT1}, s3'); i(f's_lshl_b32 {sT1}, {sT1}, 6'); i(f's_add_u32 {sT1}, {sT1}, {STBASE}')
        i('s_mov_b64 exec, 1')
        for k in range(nst[0]):
            i(f'v_mov_b32 v20, s{64+k}'); i(f'buffer_store_dword v20, off, {WSP}, {sT1} offset:{4*k}')
    E.label('L_end')
    i('s_endpgm')
    E.raw(f'''.section .rodata,"a"
.p2align 6
.amdhsa_kernel {name}
  .amdhsa_next_free_vgpr 496
  .amdhsa_next_free_sgpr 102
  .amdhsa_accum_offset 256
  .amdhsa_group_segment_fixed_size 0
  .amdhsa_kernarg_size 96
  .amdhsa_user_sgpr_count 2
  .amdhsa_user_sgpr_kernarg_segment_ptr 1
  .amdhsa_system_sgpr_workgroup_id_x 1
  .amdhsa_float_denorm_mode_32 3
.end_amdhsa_kernel''')
    return E.text()
if __name__=='__main__':
    from mk import build
    t=gen()
    open('recurrent_scan__mha_block_cached__glu_gated_bilinear__decode.s','w').write(t)
    build(t,NAME,'main'); build(gen(stamps=True),NAME,'main_st')
    print('lds',LDS_BYTES,'lines',t.count('\n'))
```

```python
import sys
from emit import Emit
NAME='recurrent_scan__mha_block_cached__glu_gated_bilinear__decode_kernel'
HDR=open('recurrent_scan__mha_block_cached__glu_gated_bilinear__decode.s.ref').read().split('; Override launch')[0]
XN=0; XNROW=960; QO=3840; MLO=4352; GU=4416; HO=0; ORO=8512; ORROW=576; RING=10816
SLOT=1056; HALF=4*SLOT; GRP=8*SLOT; WRING=36*SLOT; LDS_BYTES=RING+4*WRING
SIDE0=3*GRP
FBASE=512<<10; MLBASE=768<<10; STBASE=1<<20
X,K,V,WQ,WO,F1,WD,OUT,DBG,WSP,WSC,WSF,DBGC=[f's[{8+4*i}:{11+4*i}]' for i in range(13)]
def srd_base(n): return int(n[2:].split(':')[0])
sB,sH,sSP,sKV='s4','s5','s6','s7'
sT,sRING,sWQ,sWO='s60','s61','s62','s63'
sF1,sWD,sT1,sT2,sY,sTMO,sC,sCY,sCF,sCML,sFI,sCB='s88','s89','s90','s91','s92','s93','s94','s95','s96','s97','s98','s99'
sKO='s93'
vL,vK,vV,vWQ,vF1,vW4='v1','v2','v3','v4','v5','v6'
vTW=['v7','v8','v9','v10']; vT4=['v11','v12']; vTV=['v13','v14']; vA='v15'; vLIN='v16'; vA2='v17'; vMAX='v18'; vCNT='v19'
def vr(a,n): return f'v[{a}:{a+n-1}]' if n>1 else f'v{a}'
def ar(a,n): return f'a[{a}:{a+n-1}]'
DPP='row_mask:0xf bank_mask:0xf'
QF=160; QACC=176; SC=192; OA=224; TT=240; AT=28; PV=32; TV=96; WDR=128; FA=224

def gen(stamps=False, name=NAME, opts=None):
    o=dict(npb=6, wo_pre=0, catch=4, pre_at=10, hpol='sc1', first=3); o.update(opts or {})
    hp=o['hpol']
    E=Emit(); i=E.i
    nst=[0]
    def stamp():
        if not stamps: return
        i('s_memrealtime s[100:101]'); i('s_waitcnt lgkmcnt(0)'); E.ds_done=len(E.ds)
        i(f's_mov_b32 s{64+nst[0]}, s100'); nst[0]+=1
    def srd(n,p,nrec):
        b=srd_base(n)
        i(f's_mov_b32 s{b}, s{p}'); i(f's_mov_b32 s{b+1}, s{p+1}')
        if nrec is not None: i(f's_mov_b32 s{b+2}, {nrec}')
        i(f's_mov_b32 s{b+3}, 0x20000')
    def rnd(v): i(f'v_cvt_pk_bf16_f32 {v}, {v}, {v}'); i(f'v_and_b32 {v}, 0xffff0000, {v}')
    def xrow(v,t,op='add'):
        i(f'v_mov_b32 {t}, {v}'); i(f'v_permlane16_swap_b32 {t}, {v}'); i(f'v_{op}_f32 {v}, {v}, {t}')
        i(f'v_mov_b32 {t}, {v}'); i(f'v_permlane32_swap_b32 {t}, {v}'); i(f'v_{op}_f32 {v}, {v}, {t}')
    def allsum(v,t,op='add'):
        for r in (1,2,4,8): i(f'v_{op}_f32_dpp {v}, {v}, {v} row_ror:{r} {DPP}')
        xrow(v,t,op)
    def red4(a):
        i(f'v_permlane32_swap_b32 v{a}, v{a+1}'); i(f'v_permlane32_swap_b32 v{a+2}, v{a+3}')
        i(f'v_add_f32 v{a}, v{a}, v{a+1}'); i(f'v_add_f32 v{a+2}, v{a+2}, v{a+3}')
        i(f'v_permlane16_swap_b32 v{a}, v{a+2}'); i(f'v_add_f32 v{a}, v{a}, v{a+2}')
        i(f'v_add_f32_dpp v{a}, v{a}, v{a} row_ror:4 {DPP}'); i(f'v_add_f32_dpp v{a}, v{a}, v{a} row_ror:8 {DPP}')
    E.raw(HDR.rstrip('\n'))
    E.raw(f'; @launch grid=(256,1,1) block=(256,1,1) lds={LDS_BYTES}')
    E.raw(f'.amdgcn_target "amdgcn-amd-amdhsa--gfx950"\n.text\n.globl {name}\n.p2align 8\n.type {name},@function\n{name}:')
    i('s_cmp_ge_u32 s2, 256'); i('s_cbranch_scc1 L_end')
    if stamps: i('s_memrealtime s[100:101]')
    i('s_load_dwordx16 s[64:79], s[0:1], 0'); i('s_load_dwordx8 s[80:87], s[0:1], 64')
    i('v_lshrrev_b32 v1, 6, v0'); i('v_readfirstlane_b32 s3, v1'); i(f'v_and_b32 {vL}, 63, v0')
    i(f's_and_b32 {sH}, s2, 7'); i(f's_lshl_b32 {sH}, {sH}, 1'); i(f's_bfe_u32 {sT}, s2, 0x10003'); i(f's_add_u32 {sH}, {sH}, {sT}')
    i(f's_lshr_b32 {sB}, s2, 6'); i(f's_bfe_u32 {sSP}, s2, 0x20004')
    i(f's_lshl_b32 {sKV}, {sB}, 4'); i(f's_add_u32 {sKV}, {sKV}, {sH}'); i(f's_lshl_b32 {sKV}, {sKV}, 2'); i(f's_add_u32 {sKV}, {sKV}, {sSP}')
    i(f's_lshl_b32 {sKV}, {sKV}, 19'); i(f's_lshl_b32 {sT}, s3, 12'); i(f's_add_u32 {sKV}, {sKV}, {sT}')
    i(f's_mul_i32 {sRING}, s3, {WRING}'); i(f's_add_u32 {sRING}, {sRING}, {RING}')
    i(f's_lshl_b32 {sWQ}, {sH}, 9'); i(f's_lshl_b32 {sT}, s3, 7'); i(f's_add_u32 {sWQ}, {sWQ}, {sT}')
    i(f'v_lshlrev_b32 {vLIN}, 4, {vL}')
    i(f'v_and_b32 v20, 7, {vL}'); i(f'v_lshrrev_b32 v21, 3, {vL}')
    i(f'v_lshlrev_b32 {vK}, 9, v20'); i(f'v_lshl_add_u32 {vK}, v21, 4, {vK}')
    i('v_and_b32 v22, 3, v21'); i('v_lshrrev_b32 v23, 2, v21'); i('v_lshl_add_u32 v22, v23, 3, v22')
    i('v_lshrrev_b32 v23, 1, v21'); i('v_lshlrev_b32 v23, 1, v23'); i('v_xor_b32 v23, v23, v20'); i('v_lshlrev_b32 v23, 4, v23')
    i(f'v_lshl_add_u32 {vWQ}, v22, 13, v23')
    i(f'v_mul_u32_u24 {vF1}, 3584, v22'); i(f'v_add_u32 {vF1}, {vF1}, v23')
    i(f'v_cmp_gt_u32 vcc, 56, {vL}'); i('v_bfrev_b32 v24, 1'); i(f'v_cndmask_b32 v24, v24, {vLIN}, vcc')
    i(f's_add_u32 {sT1}, {sB}, s3'); i(f's_and_b32 {sT1}, {sT1}, 3'); i(f's_mul_i32 {sT1}, {sT1}, 896')
    i('s_waitcnt lgkmcnt(0)')
    if stamps: i('s_mov_b32 s94, s100'); i('s_memrealtime s[100:101]'); i('s_waitcnt lgkmcnt(0)'); i('s_mov_b32 s95, s100')
    srd(X,64,3584); srd(K,66,0x8000000); srd(WQ,70,0 if o.get('nullwq') else 448*4096*2)
    i(f'buffer_load_dwordx4 v[20:23], v24, {X}, {sT1} offen nt',tag='x')
    wp=o['wo_pre']
    wo=[('wo',n) for n in range(16)]
    side=[('wq',s) for s in range(14)]+[('f1',s) for s in range(7)]+wo[:wp]+[('wd',n) for n in range(4)]+wo[wp:]
    sidx={g:n for n,g in enumerate(side)}
    def hbase(g): return SIDE0+(sidx[g]%3)*HALF
    def dma(voff,srdn,sbase,memoff,ldsoff,tag):
        i(f's_add_u32 m0, {sRING}, {ldsoff}'); i(f's_add_u32 {sT}, {sbase}, {memoff}')
        i(f'buffer_load_dwordx4 {voff}, {srdn}, {sT} offen nt lds',tag=tag)
    RB=[0,16,4,20]
    def side_load(g,sl):
        kind,n=g
        if kind=='wq': dma(vWQ,WQ,sWQ,(32*n+RB[sl])*8192,hbase(g)+sl*SLOT,g)
        elif kind=='f1': dma(vF1,F1,sF1,(32*n+RB[sl])*3584,hbase(g)+sl*SLOT,g)
        elif kind=='wo':
            s,e=n//2,(n%2)*4+sl
            dma(vW4,WO,sWO,(128*(s//4)+16*e+4*(s%4))*896,hbase(g)+sl*SLOT,g)
        elif kind=='wd':
            s,e=n//2,(n%2)*4+sl
            dma(vW4,WD,sWD,(32*s+4*e)*896,hbase(g)+sl*SLOT,g)
    def kreg(T,k):
        if T<4: return vr(32+32*T+4*k,4)
        if T<12: return ar(32*(T-4)+4*k,4)
        return vr(32+32*(T-12)+4*k,4)
    prim=[('k',m) for m in range(96)]+[('v',m) for m in range(8)]+[('k',m) for m in range(96,128)]+[('v',m) for m in range(8,128)]
    st=dict(p=0,s=0,kdone=0,vdone=0,sdone=0)
    def prim_ok():
        if st['p']>=len(prim): return False
        kind,m=prim[st['p']]
        if kind=='k': return m//8<12 or st['kdone']>m//8-12
        return m//8-3<st['vdone']
    def prim_load():
        kind,m=prim[st['p']]; st['p']+=1
        if kind=='k':
            if m%4==0: i(f's_add_u32 {sKO}, {sKV}, {(m//4)*16384}')
            i(f'buffer_load_dwordx4 {kreg(m//8,m%8)}, {vK}, {K}, {sKO} offen offset:{(m%4)*128} nt',tag=('k',m//8))
        else:
            n,e=m//8,m%8
            dma(vV,V,sKV,(2*n+e//4)*16384+(e%4)*1024,(n%3)*GRP+e*SLOT,('v',n))
    def side_ok(): return st['s']<len(side) and st['s']-3<st['sdone']
    credit=[0]
    def quad():
        for _ in range(4): prim_load()
    def batch(np_,withside=True,sidefirst=False):
        g=None
        if withside and side_ok(): g=side[st['s']]; st['s']+=1
        if sidefirst and g:
            for sl in range(4): side_load(g,sl)
            g=None
        credit[0]+=np_
        nq=credit[0]//4
        sl=0; done=0
        for k in range(nq):
            if not prim_ok(): credit[0]=0; break
            quad(); credit[0]-=4; done+=1
            if g:
                upto=4 if k==nq-1 else (4*(k+1))//nq
                while sl<upto: side_load(g,sl); sl+=1
        while g and sl<4: side_load(g,sl); sl+=1
    for _ in range(o['first']):
        batch(o['npb'])
        if stamps and _==0: i('s_memrealtime s[100:101]'); i('s_waitcnt lgkmcnt(0)'); i('s_mov_b32 s64, s94'); i('s_mov_b32 s65, s95'); i('s_mov_b32 s66, s100'); nst[0]+=3
    srd(V,68,0x8000000); srd(WO,72,0 if o.get('nullwo') else 4096*448*2); srd(OUT,82,3584); srd(DBG,84,256); srd(WSP,86,4<<20)
    i(f's_and_b32 {sT}, s2, 7'); i(f's_cmp_eq_u32 {sT}, 7'); i(f's_cselect_b32 {sCB}, 32, s2')
    i(f's_cmp_lt_u32 {sCB}, 32'); i(f's_cselect_b32 s{srd_base(WSC)+2}, {4<<20}, 0'); i(f's_cselect_b32 s{srd_base(DBGC)+2}, 256, 0')
    srd(WSC,86,None); srd(DBGC,84,None)
    i(f's_sub_u32 {sFI}, s2, 32'); i(f's_cmp_lt_u32 {sFI}, 28'); i(f's_cselect_b32 {sFI}, {sFI}, 0')
    fsz=0 if o.get('nullf') else 448*1792*2
    i(f's_cselect_b32 s{srd_base(F1)+2}, {fsz}, 0'); i(f's_cselect_b32 s{srd_base(WD)+2}, {fsz}, 0'); i(f's_cselect_b32 s{srd_base(WSF)+2}, {4<<20}, 0')
    srd(WD,80,None); srd(WSF,86,None)
    i('s_cmp_lt_u32 s3, 2'); i(f's_cselect_b32 s{srd_base(F1)}, s76, s78'); i(f's_cselect_b32 s{srd_base(F1)+1}, s77, s79'); i(f's_mov_b32 s{srd_base(F1)+3}, 0x20000')
    i(f's_and_b32 {sT1}, s3, 1'); i(f's_mul_i32 {sF1}, {sT1}, {224*3584}'); i(f's_lshl_b32 {sT}, {sFI}, 7'); i(f's_add_u32 {sF1}, {sF1}, {sT}')
    i(f's_lshl_b32 {sT2}, s3, 8'); i(f's_mul_i32 {sWO}, {sH}, {256*896}'); i(f's_add_u32 {sWO}, {sWO}, {sT2}')
    i(f's_mul_i32 {sWD}, {sFI}, {64*896}'); i(f's_add_u32 {sWD}, {sWD}, {sT2}')
    i(f's_lshl_b32 {sY}, {sB}, 2'); i(f's_add_u32 {sY}, {sY}, s3'); i(f's_lshl_b32 {sY}, {sY}, 15')
    i(f's_lshl_b32 {sT}, {sH}, 2'); i(f's_add_u32 {sT}, {sT}, {sSP}'); i(f's_lshl_b32 {sT}, {sT}, 6'); i(f's_add_u32 {sY}, {sY}, {sT}')
    i(f's_and_b32 {sT}, s2, 31'); i(f's_lshr_b32 {sCML}, {sT}, 3'); i(f's_lshl_b32 {sT}, {sT}, 2'); i(f's_add_u32 {sT}, {sT}, s3')
    i(f's_lshl_b32 {sCY}, {sT}, 12'); i(f's_lshl_b32 {sCF}, {sT}, 11'); i(f's_add_u32 {sCF}, {sCF}, {FBASE}')
    i(f's_lshl_b32 {sCML}, {sCML}, 9'); i(f's_add_u32 {sCML}, {sCML}, {MLBASE}')
    i(f's_mov_b32 {sC}, 0x3db8aa3b')
    stamp()
    i(f'v_lshrrev_b32 v25, 4, {vL}'); i(f'v_bfe_u32 v26, {vL}, 2, 2'); i(f'v_and_b32 v27, 3, {vL}')
    i(f'v_lshrrev_b32 v28, 5, {vL}'); i('v_lshlrev_b32 v28, 7, v28'); i(f'v_xor_b32 {vV}, v28, {vLIN}')
    i('v_and_b32 v28, 1, v25'); i('v_lshlrev_b32 v29, 3, v28'); i(f'v_and_b32 v30, 15, {vL}'); i('v_xor_b32 v29, v29, v30'); i('v_lshlrev_b32 v29, 4, v29')
    i(f'v_add_u32 v30, {sT2}, v29'); i('v_cmp_gt_u32 vcc, 896, v30'); i(f'v_mul_u32_u24 {vW4}, 896, v25'); i(f'v_add_u32 {vW4}, {vW4}, v29')
    i('v_bfrev_b32 v29, 1'); i(f'v_cndmask_b32 {vW4}, v29, {vW4}, vcc')
    i('v_lshl_add_u32 v29, v28, 2, v26')
    i('v_lshrrev_b32 v30, 1, v25'); i(f'v_mul_u32_u24 v30, {SLOT}, v30'); i('v_lshl_add_u32 v30, v29, 7, v30'); i('v_lshl_add_u32 v30, v27, 3, v30')
    i(f'v_add_u32 v30, {sRING}, v30'); i('v_lshrrev_b32 v29, 1, v29')
    for t in range(4):
        i(f'v_xor_b32 v31, {t}, v29'); i(f'v_lshl_add_u32 {vTW[t]}, v31, 5, v30')
    i(f'v_mul_u32_u24 v30, {SLOT}, v26'); i('v_lshl_add_u32 v30, v25, 8, v30'); i('v_lshl_add_u32 v30, v27, 3, v30'); i(f'v_add_u32 v30, {sRING}, v30')
    i('v_lshlrev_b32 v31, 7, v28'); i(f'v_add_u32 {vT4[0]}, v30, v31'); i(f'v_sub_u32 {vT4[1]}, v30, v31')
    i('v_lshrrev_b32 v30, 1, v26'); i('v_lshl_add_u32 v30, v25, 1, v30'); i(f'v_mul_u32_u24 v30, {SLOT}, v30'); i('v_and_b32 v31, 1, v26')
    i('v_lshl_add_u32 v30, v31, 9, v30'); i('v_lshl_add_u32 v30, v27, 3, v30'); i(f'v_add_u32 v30, {sRING}, v30')
    i('v_lshlrev_b32 v31, 7, v31'); i(f'v_add_u32 {vTV[0]}, v30, v31'); i(f'v_sub_u32 {vTV[1]}, v30, v31')
    i(f'v_mul_u32_u24 {vA}, {XNROW}, v27'); i(f'v_lshl_add_u32 {vA}, v25, 4, {vA}')
    i(f's_mul_i32 {sT1}, {sT1}, 448'); i(f'v_add_u32 {vA2}, {sT1}, {vA}')
    i(f'v_mov_b32 {vMAX}, 0xff800000')
    E.wait_vm('x')
    L=192
    for k in range(4):
        i(f'v_lshlrev_b32 v{L+2*k}, 16, v{20+k}'); i(f'v_and_b32 v{L+1+2*k}, 0xffff0000, v{20+k}')
    a,b_,c_,d_,e_,f_,g_=[f'v{L+8+k}' for k in range(7)]
    i(f'v_add_f32 {a}, v{L}, v{L+1}'); i(f'v_add_f32 {b_}, v{L+2}, v{L+3}'); i(f'v_add_f32 {c_}, v{L+4}, v{L+5}'); i(f'v_add_f32 {d_}, v{L+6}, v{L+7}')
    i(f'v_add_f32 {a}, {a}, {b_}'); i(f'v_add_f32 {c_}, {c_}, {d_}'); i(f'v_add_f32 {a}, {a}, {c_}')
    allsum(a,b_)
    i(f'v_mul_f32 {a}, 0x3b124925, {a}')
    i(f'v_sub_f32 {c_}, v{L}, {a}'); i(f'v_mul_f32 {d_}, {c_}, {c_}')
    for k in range(1,8):
        i(f'v_sub_f32 {c_}, v{L+k}, {a}'); i(f'v_fmac_f32 {d_}, {c_}, {c_}')
    i(f'v_cmp_gt_u32 vcc, 56, {vL}'); i(f'v_cndmask_b32 {d_}, 0, {d_}, vcc')
    allsum(d_,b_)
    i(f'v_mul_f32 {d_}, 0x3b124925, {d_}')
    rnd(a); rnd(d_); i(f'v_add_f32 {d_}, 0x3727c5ac, {d_}'); rnd(d_); i(f'v_sqrt_f32 {d_}, {d_}'); rnd(d_); i(f'v_rcp_f32 {e_}, {d_}')
    for k in range(8): i(f'v_sub_f32 v{L+k}, v{L+k}, {a}')
    for k in range(4):
        i(f'v_cvt_pk_bf16_f32 v{20+k}, v{L+2*k}, v{L+1+2*k}')
        i(f'v_lshlrev_b32 v{L+2*k}, 16, v{20+k}'); i(f'v_and_b32 v{L+1+2*k}, 0xffff0000, v{20+k}')
    for k in range(8):
        i(f'v_mul_f32 {f_}, v{L+k}, {e_}'); i(f'v_fma_f32 {g_}, -{f_}, {d_}, v{L+k}'); i(f'v_fma_f32 v{L+k}, {g_}, {e_}, {f_}')
    for k in range(4): i(f'v_cvt_pk_bf16_f32 v{20+k}, v{L+2*k}, v{L+1+2*k}')
    i(f's_mul_i32 {sT1}, s3, {XNROW}'); i(f'v_add_u32 v24, {sT1}, {vLIN}')
    i('s_mov_b32 exec_hi, 0x00ffffff'); i(f'ds_write_b128 v24, v[20:23] offset:{XN}'); i('s_mov_b32 exec_hi, -1')
    E.wait_ds(); i('s_barrier')
    stamp()
    def consume_side():
        g=side[st['sdone']]; kind,n=g
        E.wait_vm(g)
        if kind in('wq','f1'):
            i(f'ds_read_b128 {vr(AT,4)}, {vA if kind=="wq" else vA2} offset:{XN+n*64}')
            for t in range(4):
                for hh in range(2): i(f'ds_read_b64_tr_b16 {vr(TT+4*t+2*hh,2)}, {vTW[t]} offset:{hbase(g)+2*hh*SLOT}',tag=('r8',t))
            for t in range(4):
                E.wait_ds(('r8',t))
                i(f'v_mfma_f32_16x16x32_bf16 {vr(QACC+4*t,4)}, {vr(AT,4)}, {vr(TT+4*t,4)}, {"0" if n==0 else vr(QACC+4*t,4)}')
        else:
            s,hh=n//2,n%2
            for t in range(8):
                dst=ar((s*8+t)*4+2*hh,2) if kind=='wo' else vr(WDR+(s*8+t)*4+2*hh,2)
                i(f'ds_read_b64_tr_b16 {dst}, {vT4[t//4]} offset:{hbase(g)+t*32}')
            E.wait_ds()
        st['sdone']+=1
    def clears():
        for r in range(4): i(f'v_mov_b32 v{20+r}, -1')
        for k in range(4): i(f'buffer_store_dwordx4 v[20:23], {vLIN}, {WSC}, {sCY} offen offset:{k*1024} {hp}',tag='clr')
        i(f'buffer_store_dwordx4 v[20:23], {vLIN}, {WSC}, {sCF} offen {hp}',tag='clr')
        i(f'v_and_b32 v24, 0x1ff, {vLIN}')
        i(f'buffer_store_dwordx4 v[20:23], v24, {WSC}, {sCML} offen {hp}',tag='clr')
        i(f'v_cmp_gt_u32 vcc, 48, {vL}')
        for r in range(4): i(f'v_cndmask_b32 v{24+r}, 0, v{20+r}, vcc')
        i(f'buffer_store_dwordx4 v[24:27], {vLIN}, {WSC}, {sCF} offen offset:1024 {hp}',tag='clr')
    for s in range(14):
        consume_side(); batch(o['npb'])
        if s==1: clears()
        if s in (4,9): stamp()
        if s==10:
            i('v_mov_b32 v20, 1'); i('s_mov_b64 exec, 1')
            i(f'buffer_atomic_add v20, off, {DBGC}, 0 sc1',tag='atom'); i('s_mov_b64 exec, -1')
    i(f's_lshl_b32 {sT1}, s3, 7'); i(f'v_lshlrev_b32 v24, 1, {vL}'); i(f'v_add_u32 v24, {sT1}, v24')
    i(f'v_cvt_pk_bf16_f32 v20, v{QACC}, v{QACC+4}'); i(f'v_cvt_pk_bf16_f32 v21, v{QACC+8}, v{QACC+12}')
    i('s_mov_b64 exec, 0xffff')
    i(f'ds_write_b16 v24, v20 offset:{QO}'); i(f'ds_write_b16_d16_hi v24, v20 offset:{QO+32}')
    i(f'ds_write_b16 v24, v21 offset:{QO+64}'); i(f'ds_write_b16_d16_hi v24, v21 offset:{QO+96}')
    i('s_mov_b64 exec, -1')
    i(f'v_lshrrev_b32 v24, 3, {vL}'); i('v_lshlrev_b32 v24, 4, v24')
    E.wait_ds(); i('s_barrier')
    for s in range(4): i(f'ds_read_b128 {vr(QF+4*s,4)}, v24 offset:{QO+s*128}',tag='qf')
    E.wait_ds('qf')
    stamp()
    def post(T):
        a=OA+8*(T%2)
        for r in range(4): i(f'v_permlane32_swap_b32 v{a+r}, v{a+4+r}')
        for r in range(4): i(f'v_add_f32_dpp v{a+r}, v{a+4+r}, v{a+r} row_ror:8 {DPP}')
        i(f'v_max3_f32 {vMAX}, v{a}, v{a+1}, {vMAX}'); i(f'v_max3_f32 {vMAX}, v{a+2}, v{a+3}, {vMAX}')
        i(f'v_cvt_pk_bf16_f32 v{SC+2*T}, v{a}, v{a+1}'); i(f'v_cvt_pk_bf16_f32 v{SC+2*T+1}, v{a+2}, v{a+3}')
    pend=[None]
    def ktile():
        T=st['kdone']
        E.wait_vm(('k',T))
        a=OA+8*(T%2)
        for s in range(4):
            for oc in range(2):
                acc=vr(a+4*oc,4)
                i(f'v_mfma_f32_16x16x32_bf16 {acc}, {kreg(T,oc*4+s)}, {vr(QF+4*s,4)}, {"0" if s==0 else acc}')
        if pend[0] is not None: post(pend[0])
        pend[0]=T; st['kdone']+=1
    def k_issued(T): return all(prim.index(('k',m))<st['p'] for m in range(8*T,8*T+8))
    def vm_index(tag): return max(k for k,(t,_) in enumerate(E.vm) if t==tag)
    did_cnt=False
    while st['kdone']<16:
        g=side[st['sdone']]
        can_side = not (g[0]=='wd') and not (g[0]=='wo' and st['kdone']<12)
        n=0
        lim=vm_index(g) if can_side else 10**9
        while st['kdone']<16 and n<o['catch'] and k_issued(st['kdone']) and vm_index(('k',st['kdone']))<lim:
            ktile(); n+=1
            if n==1 or not can_side: batch(o['npb'] if not can_side else 2,withside=False)
        if can_side and st['kdone']<16 or (can_side and g[0]=='f1'):
            consume_side()
            if g==('f1',6):
                i(f's_lshl_b32 {sT1}, s3, 10'); i(f'v_add_u32 v24, {sT1}, {vLIN}')
                i('s_mov_b64 exec, 0xffff')
                for t in range(4): i(f'ds_write_b128 v24, {vr(QACC+4*t,4)} offset:{GU+t*256}')
                i('s_mov_b64 exec, -1')
            batch(o['npb'])
        if st['kdone']>=13 and not did_cnt:
            i(f'buffer_load_dword {vCNT}, off, {DBG}, 0 sc1',tag='cnt'); did_cnt=True
        if st['kdone']==12 and n>0: stamp()
    assert st['sdone']>=21, st
    post(pend[0])
    batch(32,withside=False)
    if o.get('verbose'): print('at softmax',st, 'outstanding',E.outstanding())
    stamp()
    xrow(vMAX,'v20','max'); rnd(vMAX); i(f'v_mul_f32 {vMAX}, {sC}, {vMAX}')
    EE=32
    for k in range(32):
        i(f'v_lshlrev_b32 v{EE+2*k}, 16, v{SC+k}'); i(f'v_and_b32 v{EE+2*k+1}, 0xffff0000, v{SC+k}')
        i(f'v_fma_f32 v{EE+2*k}, v{EE+2*k}, {sC}, -{vMAX}'); i(f'v_fma_f32 v{EE+2*k+1}, v{EE+2*k+1}, {sC}, -{vMAX}')
        i(f'v_exp_f32 v{EE+2*k}, v{EE+2*k}'); i(f'v_exp_f32 v{EE+2*k+1}, v{EE+2*k+1}')
        if k==1: i(f'v_pk_add_f32 v[20:21], {vr(EE,2)}, 0')
        if k>=2: i(f'v_pk_add_f32 v[20:21], v[20:21], {vr(EE+2*(k-1),2)}')
    i(f'v_pk_add_f32 v[20:21], v[20:21], {vr(EE+62,2)}')
    i('v_add_f32 v21, v20, v21'); xrow('v21','v22'); i(f'v_mov_b32 v20, {vMAX}')
    i(f's_lshl_b32 {sT1}, s3, 3'); i(f'v_mov_b32 v22, {sT1}')
    i('s_mov_b64 exec, 1'); i(f'ds_write_b64 v22, v[20:21] offset:{MLO}'); i('s_mov_b64 exec, -1')
    i('v_mov_b32 v22, 0')
    E.wait_ds(); i('s_barrier')
    i(f'ds_read_b128 v[24:27], v22 offset:{MLO}'); i(f'ds_read_b128 v[28:31], v22 offset:{MLO+16}')
    E.wait_ds()
    i('v_max3_f32 v20, v24, v26, v28'); i('v_max_f32 v20, v20, v30')
    i(f'v_sub_f32 v22, {vMAX}, v20'); i('v_exp_f32 v22, v22')
    for k in (24,26,28,30): i(f'v_sub_f32 v{k}, v{k}, v20'); i(f'v_exp_f32 v{k}, v{k}')
    i('v_mov_b32 v23, v22')
    i('v_mul_f32 v21, v24, v25'); i('v_fmac_f32 v21, v26, v27'); i('v_fmac_f32 v21, v28, v29'); i('v_fmac_f32 v21, v30, v31')
    for k in range(32):
        i(f'v_pk_mul_f32 {vr(EE+2*k,2)}, {vr(EE+2*k,2)}, v[22:23]')
        i(f'v_cvt_pk_bf16_f32 v{SC+k}, v{EE+2*k}, v{EE+2*k+1}')
    stamp()
    def vstep():
        n=st['vdone']; g=('v',n)
        E.wait_vm(g)
        for t in range(16):
            i(f'ds_read_b64_tr_b16 {vr(TV+2*t,2)}, {vTV[(t//4)%2]} offset:{(n%3)*GRP+t*32}',tag=('rv',n,t))
        for t in range(16):
            if t%4==0: E.wait_ds(('rv',n,t+3))
            acc=vr(PV+4*t,4)
            i(f'v_mfma_f32_16x16x16_bf16 {acc}, {vr(SC+2*n,2)}, {vr(TV+2*t,2)}, {"0" if n==0 else acc}')
        st['vdone']+=1
        if n<15:
            first=min(k for k,(t,_) in enumerate(E.vm) if t==('v',n+1))
            while st['sdone']<st['s'] and vm_index(side[st['sdone']])<first+o.get('slack',0): consume_side()
        while side_ok(): batch(0,sidefirst=True)
        batch(8,withside=False)
    vstep(); vstep()
    E.wait_vm('cnt')
    i(f's_mov_b32 {sTMO}, 0x40000')
    E.label('L_cnt')
    i(f'v_readfirstlane_b32 {sT1}, {vCNT}'); i(f's_cmp_ge_u32 {sT1}, 112'); i('s_cbranch_scc1 L_cnt_ok')
    i(f's_sub_u32 {sTMO}, {sTMO}, 1'); i('s_cbranch_scc1 L_cnt_ok')
    E.raw(f'    s_sleep 4\n    buffer_load_dword {vCNT}, off, {DBG}, 0 sc1\n    s_waitcnt vmcnt(0)\n    s_branch L_cnt')
    E.label('L_cnt_ok')
    i(f's_lshr_b32 {sT1}, {sKV}, 19'); i(f's_lshl_b32 {sT1}, {sT1}, 3'); i(f's_add_u32 {sT1}, {sT1}, {MLBASE}')
    i('s_mov_b64 exec, 1'); i(f'buffer_store_dwordx2 v[20:21], off, {WSP}, {sT1} {hp}',tag='ml'); i('s_mov_b64 exec, -1')
    G=224
    for k in range(4): i(f'ds_read_b128 {vr(G+4*k,4)}, {vLIN} offset:{GU+k*1024}',tag='gu')
    i(f'v_lshrrev_b32 v22, 5, {vL}'); i('v_lshlrev_b32 v22, 6, v22'); i(f'v_and_b32 v23, 3, {vL}'); i('v_lshl_add_u32 v22, v23, 4, v22')
    i(f'v_bfe_u32 v24, {vL}, 2, 3'); i('v_lshl_add_u32 v22, v24, 1, v22'); i(f's_mul_i32 {sT1}, s3, 768'); i(f'v_add_u32 v22, {sT1}, v22')
    i('v_mul_u32_u24 v23, 192, v23'); i(f'v_lshrrev_b32 v24, 4, {vL}'); i('v_lshl_add_u32 v23, v24, 4, v23'); i(f'v_add_u32 v23, {sT1}, v23')
    E.wait_ds('gu')
    for r in range(4):
        i(f'v_add_f32 v{G+r}, v{G+r}, v{G+4+r}'); i(f'v_add_f32 v{G+8+r}, v{G+8+r}, v{G+12+r}')
        rnd(f'v{G+r}'); rnd(f'v{G+8+r}'); i(f'v_mul_f32 v{G+r}, v{G+r}, v{G+8+r}')
    i(f'v_cvt_pk_bf16_f32 v{G}, v{G}, v{G+1}'); i(f'v_cvt_pk_bf16_f32 v{G+1}, v{G+2}, v{G+3}')
    i(f'ds_write_b16 v22, v{G} offset:{HO}'); i(f'ds_write_b16_d16_hi v22, v{G} offset:{HO+192}')
    i(f'ds_write_b16 v22, v{G+1} offset:{HO+384}'); i(f'ds_write_b16_d16_hi v22, v{G+1} offset:{HO+576}')
    E.wait_ds()
    i(f'ds_read_b128 v[24:27], v23 offset:{HO}'); i(f'ds_read_b128 v[28:31], v23 offset:{HO+64}')
    vYO,vFO='v2','v4'
    i(f'v_bfe_u32 v20, {vL}, 2, 2'); i(f'v_and_b32 v21, 3, {vL}'); i('v_lshlrev_b32 v21, 4, v21')
    i(f'v_lshl_add_u32 {vYO}, v20, 12, v21'); i(f'v_lshl_add_u32 {vFO}, v20, 11, v21')
    E.wait_ds()
    while st['sdone']<=sidx[('wd',3)]: vstep()
    if o.get('verbose'): print('at ffn2',st)
    for s in range(2):
        for t in range(8):
            acc=vr(FA+4*t,4)
            i(f'v_mfma_f32_16x16x32_bf16 {acc}, {vr(24+4*s,4)}, {vr(WDR+(s*8+t)*4,4)}, {"0" if s==0 else acc}')
    for t in range(8):
        for r in range(4): i(f'v_mov_b32 v{128+r*8+t}, v{FA+4*t+r}')
    i('s_mov_b64 exec, 0xffff')
    for r in range(4):
        i(f's_add_u32 {sT1}, {sB}, {r}'); i(f's_and_b32 {sT1}, {sT1}, 3'); i(f's_lshl_b32 {sT1}, {sT1}, 2'); i(f's_add_u32 {sT1}, {sT1}, s3')
        i(f's_lshl_b32 {sT1}, {sT1}, 14'); i(f's_lshl_b32 {sT2}, {sFI}, 6'); i(f's_add_u32 {sT1}, {sT1}, {sT2}'); i(f's_add_u32 {sT1}, {sT1}, {FBASE}')
        i(f'buffer_store_dwordx4 {vr(128+r*8,4)}, {vFO}, {WSF}, {sT1} offen {hp}',tag='fst')
        i(f's_add_u32 {sT1}, {sT1}, 8192')
        i(f'buffer_store_dwordx4 {vr(128+r*8+4,4)}, {vFO}, {WSF}, {sT1} offen {hp}',tag='fst')
    i('s_mov_b64 exec, -1')
    stamp()
    while st['vdone']<o['pre_at']: vstep()
    vML,vXO='v5','v9'
    i(f'v_lshrrev_b32 {vML}, 2, {vL}'); i(f'v_lshlrev_b32 {vML}, 3, {vML}')
    i(f'v_bfe_u32 v20, {vL}, 4, 1'); i(f'v_bfe_u32 v21, {vL}, 5, 1'); i('v_lshl_add_u32 v20, v20, 1, v21')
    i(f's_and_b32 {sT1}, s2, 7'); i(f's_lshl_b32 {sT1}, {sT1}, 6'); i(f's_lshl_b32 {sT2}, s3, 2'); i(f's_add_u32 {sT1}, {sT1}, {sT2}')
    i(f's_bfe_u32 {sT2}, s2, 0x20003'); i(f's_mul_i32 {sT2}, {sT2}, 448'); i(f's_add_u32 {sT1}, {sT1}, {sT2}')
    i(f'v_and_b32 v21, 15, {vL}'); i(f'v_lshl_add_u32 {vXO}, v20, 4, v21'); i(f'v_add_u32 {vXO}, {sT1}, {vXO}'); i(f'v_lshlrev_b32 {vXO}, 1, {vXO}')
    i('v_cmp_gt_u32 vcc, 4, v21'); i('v_bfrev_b32 v20, 1'); i(f'v_cndmask_b32 {vXO}, v20, {vXO}, vcc')
    def preloads(ii):
        for k in range(4): ii(f'buffer_load_dwordx2 {vr(160+2*k,2)}, {vML}, {WSC}, {sCML} offen offset:{k*128} {hp}')
        for k in range(2): ii(f'buffer_load_dwordx4 {vr(168+4*k,4)}, {vLIN}, {WSC}, {sCF} offen offset:{k*1024} {hp}')
    preloads(lambda t:i(t,tag='pre'))
    i(f'buffer_load_ushort v176, {vXO}, {X}, 0 offen nt',tag='pre')
    vstep(); vstep(); vstep()
    E.wait_vm('pre')
    i(f's_cmp_ge_u32 {sCB}, 32'); i('s_cbranch_scc1 L_pre_done')
    i(f's_mov_b32 {sTMO}, 0x40000')
    E.label('L_pre')
    WT=178
    for k in range(4):
        m,l=160+2*k,161+2*k
        i(f'v_max_f32_dpp v20, v{m}, v{m} row_ror:4 {DPP}'); i(f'v_max_f32_dpp v20, v20, v20 row_ror:8 {DPP}')
        i(f'v_sub_f32 v20, v{m}, v20'); i('v_exp_f32 v20, v20'); i(f'v_mul_f32 v21, v20, v{l}')
        i(f'v_add_f32_dpp v21, v21, v21 row_ror:4 {DPP}'); i(f'v_add_f32_dpp v21, v21, v21 row_ror:8 {DPP}')
        i('v_rcp_f32 v21, v21'); i(f'v_mul_f32 v{WT+k}, v20, v21')
    for r in range(4): i(f'v_add_f32 v{24+r}, v{168+r}, v{172+r}')
    red4(24)
    i(f'v_add_f32 v20, v{WT}, v{WT+1}'); i(f'v_add_f32 v21, v{WT+2}, v{WT+3}'); i('v_add_f32 v20, v20, v21')
    i('v_cmp_u_f32 vcc, v20, v24'); i('s_cmp_eq_u64 vcc, 0'); i('s_cbranch_scc1 L_pre_ok')
    i(f's_sub_u32 {sTMO}, {sTMO}, 1'); i('s_cbranch_scc1 L_pre_ok')
    E.raw('    s_sleep 4'); preloads(lambda t:E.raw('    '+t)); E.raw('    s_waitcnt vmcnt(0)\n    s_branch L_pre')
    E.label('L_pre_ok')
    rnd('v24'); i('v_mul_f32 v20, 0xbfb8aa3b, v24'); i('v_exp_f32 v20, v20'); i('v_add_f32 v20, 1.0, v20'); i('v_rcp_f32 v20, v20')
    i(f'v_mul_f32 v{WT+4}, v24, v20'); rnd(f'v{WT+4}'); i('v_lshlrev_b32 v176, 16, v176')
    E.label('L_pre_done')
    i('s_nop 1')
    vOW,vOA='v7','v8'
    i(f's_mul_i32 {sT1}, s3, {ORROW}'); i(f'v_add_u32 {vOW}, {sT1}, {vLIN}')
    i(f'v_and_b32 v20, 3, {vL}'); i(f'v_mul_u32_u24 {vOA}, {ORROW}, v20'); i(f'v_lshrrev_b32 v20, 4, {vL}'); i(f'v_lshl_add_u32 {vOA}, v20, 4, {vOA}')
    i(f's_add_u32 {sT2}, {sY}, 16384')
    while st['vdone']<16:
        if st['vdone']==15:
            assert st['sdone']==len(side), st
            stamp()
        vstep()
    stamp()
    for k in range(8): i(f'v_cvt_pk_bf16_f32 v{128+k}, v{PV+8*k}, v{PV+8*k+4}')
    i('s_mov_b64 exec, 0xffff')
    i(f'ds_write_b128 {vOW}, v[128:131] offset:{ORO}'); i(f'ds_write_b128 {vOW}, v[132:135] offset:{ORO+256}')
    i('s_mov_b64 exec, -1')
    E.wait_ds(); i('s_barrier')
    for s in range(8): i(f'ds_read_b128 {vr(96+4*s,4)}, {vOA} offset:{ORO+s*64}',tag=('oa',s))
    for hf in range(2):
        for s in range(8):
            E.wait_ds(('oa',s))
            for t in range(4*hf,4*hf+4):
                acc=vr(FA+4*t,4)
                i(f'v_mfma_f32_16x16x32_bf16 {acc}, {vr(96+4*s,4)}, {ar((s*8+t)*4,4)}, {"0" if s==0 else acc}')
            if hf==1 and s==2:
                for t in range(4): i(f'v_pk_add_f32 {vr(FA+4*t,2)}, {vr(FA+4*t,2)}, {vr(FA+4*t+2,2)}')
            if hf==1 and s==3:
                for t in range(4): i(f'v_add_f32 v{24+t}, v{FA+4*t}, v{FA+4*t+1}')
                i('s_mov_b64 exec, 0xffff')
                i(f'buffer_store_dwordx4 v[24:27], {vYO}, {WSP}, {sY} offen {hp}',tag='y')
                i('s_mov_b64 exec, -1')
    for t in range(4,8): i(f'v_pk_add_f32 {vr(FA+4*t,2)}, {vr(FA+4*t,2)}, {vr(FA+4*t+2,2)}')
    for t in range(4,8): i(f'v_add_f32 v{24+t}, v{FA+4*t}, v{FA+4*t+1}')
    i('s_mov_b64 exec, 0xffff')
    i(f'buffer_store_dwordx4 v[28:31], {vYO}, {WSP}, {sT2} offen {hp}',tag='y')
    i('s_mov_b64 exec, -1')
    stamp()
    i(f's_cmp_ge_u32 {sCB}, 32'); i('s_cbranch_scc1 L_fin')
    i(f's_mov_b32 {sTMO}, 0x40000')
    E.label('L_poll')
    for k in range(4): i(f'buffer_load_dwordx4 {vr(128+4*k,4)}, {vLIN}, {WSC}, {sCY} offen offset:{k*1024} {hp}',tag=('yl',k))
    for k in range(4):
        E.wait_vm(('yl',k))
        for r in range(4):
            if k==0: i(f'v_mul_f32 v{144+r}, v{WT}, v{128+r}')
            else: i(f'v_fmac_f32 v{144+r}, v{WT+k}, v{128+4*k+r}')
    red4(144)
    i('v_cmp_u_f32 vcc, v144, v144'); i('s_cmp_eq_u64 vcc, 0'); i('s_cbranch_scc1 L_poll_ok')
    i(f's_sub_u32 {sTMO}, {sTMO}, 1'); i('s_cbranch_scc0 L_poll')
    E.label('L_poll_ok')
    rnd('v144'); i(f'v_mul_f32 v144, v144, v{WT+4}'); rnd('v144'); i('v_add_f32 v144, v144, v176'); i('v_cvt_pk_bf16_f32 v144, v144, v144')
    i(f'buffer_store_short v144, {vXO}, {OUT}, 0 offen')
    E.label('L_fin')
    stamp()
    if stamps:
        i(f's_lshl_b32 {sT1}, s2, 2'); i(f's_add_u32 {sT1}, {sT1}, s3'); i(f's_lshl_b32 {sT1}, {sT1}, 6'); i(f's_add_u32 {sT1}, {sT1}, {STBASE}')
        i('s_mov_b64 exec, 1')
        for k in range(nst[0]):
            i(f'v_mov_b32 v20, s{64+k}'); i(f'buffer_store_dword v20, off, {WSP}, {sT1} offset:{4*k}')
        if o.get('verbose'): print('nstamps',nst[0])
    E.label('L_end')
    i('s_endpgm')
    E.raw(f'''.section .rodata,"a"
.p2align 6
.amdhsa_kernel {name}
  .amdhsa_next_free_vgpr 512
  .amdhsa_next_free_sgpr 102
  .amdhsa_accum_offset 256
  .amdhsa_group_segment_fixed_size 0
  .amdhsa_kernarg_size 96
  .amdhsa_user_sgpr_count 2
  .amdhsa_user_sgpr_kernarg_segment_ptr 1
  .amdhsa_system_sgpr_workgroup_id_x 1
  .amdhsa_float_denorm_mode_32 3
.end_amdhsa_kernel''')
    if o.get('verbose'):
        seq=''.join({'k':'K','v':'V','wq':'q','f1':'f','wo':'o','wd':'d'}.get(t[0] if isinstance(t,tuple) else t,'.') for t,_ in E.vm)
        print(seq)
    return E.text()
if __name__=='__main__':
    from mk import build
    t=gen(opts=dict(verbose=True))
    open('recurrent_scan__mha_block_cached__glu_gated_bilinear__decode.s','w').write(t)
    build(t,NAME,'main'); build(gen(stamps=True,opts=dict(verbose=True)),NAME,'main_st')
    print('lds',LDS_BYTES,'lines',t.count('\n'))
```

```python
import sys
from emit import Emit
NAME='recurrent_scan__mha_block_cached__glu_gated_bilinear__decode_kernel'
HDR=open('recurrent_scan__mha_block_cached__glu_gated_bilinear__decode.s.ref').read().split('; Override launch')[0]
XN=0; XNROW=960; QO=3840; MLO=4352; GU=4416; HO=0; ORO=8512; ORROW=576; RING=10816
SLOT=1056; HALF=4*SLOT; GRP=8*SLOT; WRING=36*SLOT; LDS_BYTES=RING+4*WRING
SIDE0=3*GRP
FBASE=512<<10; MLBASE=768<<10; STBASE=1<<20
X,K,V,WQ,WO,F1,WD,OUT,DBG,WSP,WSC,WSF,DBGC=[f's[{8+4*i}:{11+4*i}]' for i in range(13)]
def srd_base(n): return int(n[2:].split(':')[0])
sB,sH,sSP,sKV='s4','s5','s6','s7'
sT,sRING,sWQ,sWO='s60','s61','s62','s63'
sF1,sWD,sT1,sT2,sY,sTMO,sC,sCY,sCF,sCML,sFI,sCB='s88','s89','s90','s91','s92','s93','s94','s95','s96','s97','s98','s99'
sKO='s93'
vL,vK,vV,vWQ,vF1,vW4='v1','v2','v3','v4','v5','v6'
vTW=['v7','v8','v9','v10']; vT4=['v11','v12']; vTV=['v13','v14']; vA='v15'; vLIN='v16'; vA2='v17'; vMAX='v18'; vCNT='v19'
def vr(a,n): return f'v[{a}:{a+n-1}]' if n>1 else f'v{a}'
def ar(a,n): return f'a[{a}:{a+n-1}]'
DPP='row_mask:0xf bank_mask:0xf'
QF=160; QACC=176; SC=192; OA=224; TT=240; AT=28; PV=32; TV=96; WDR=128; FA=224

def gen(stamps=False, name=NAME, opts=None):
    o=dict(npb=6, wo_pre=0, catch=4, pre_at=10, hpol='sc1', first=3, kpol='nt', vpol='nt', wpol='nt'); o.update(opts or {})
    hp=o['hpol']
    E=Emit(); i=E.i
    nst=[0]
    def stamp():
        if not stamps: return
        i('s_memrealtime s[100:101]'); i('s_waitcnt lgkmcnt(0)'); E.ds_done=len(E.ds)
        i(f's_mov_b32 s{64+nst[0]}, s100'); nst[0]+=1
    def srd(n,p,nrec):
        b=srd_base(n)
        i(f's_mov_b32 s{b}, s{p}'); i(f's_mov_b32 s{b+1}, s{p+1}')
        if nrec is not None: i(f's_mov_b32 s{b+2}, {nrec}')
        i(f's_mov_b32 s{b+3}, 0x20000')
    def rnd(v): i(f'v_cvt_pk_bf16_f32 {v}, {v}, {v}'); i(f'v_and_b32 {v}, 0xffff0000, {v}')
    def xrow(v,t,op='add'):
        i(f'v_mov_b32 {t}, {v}'); i(f'v_permlane16_swap_b32 {t}, {v}'); i(f'v_{op}_f32 {v}, {v}, {t}')
        i(f'v_mov_b32 {t}, {v}'); i(f'v_permlane32_swap_b32 {t}, {v}'); i(f'v_{op}_f32 {v}, {v}, {t}')
    def allsum(v,t,op='add'):
        for r in (1,2,4,8): i(f'v_{op}_f32_dpp {v}, {v}, {v} row_ror:{r} {DPP}')
        xrow(v,t,op)
    def red4(a):
        i(f'v_permlane32_swap_b32 v{a}, v{a+1}'); i(f'v_permlane32_swap_b32 v{a+2}, v{a+3}')
        i(f'v_add_f32 v{a}, v{a}, v{a+1}'); i(f'v_add_f32 v{a+2}, v{a+2}, v{a+3}')
        i(f'v_permlane16_swap_b32 v{a}, v{a+2}'); i(f'v_add_f32 v{a}, v{a}, v{a+2}')
        i(f'v_add_f32_dpp v{a}, v{a}, v{a} row_ror:4 {DPP}'); i(f'v_add_f32_dpp v{a}, v{a}, v{a} row_ror:8 {DPP}')
    E.raw(HDR.rstrip('\n'))
    E.raw(f'; @launch grid=(256,1,1) block=(256,1,1) lds={LDS_BYTES}')
    E.raw(f'.amdgcn_target "amdgcn-amd-amdhsa--gfx950"\n.text\n.globl {name}\n.p2align 8\n.type {name},@function\n{name}:')
    i('s_cmp_ge_u32 s2, 256'); i('s_cbranch_scc1 L_end')
    if stamps: i('s_memrealtime s[100:101]')
    i('s_load_dwordx16 s[64:79], s[0:1], 0'); i('s_load_dwordx8 s[80:87], s[0:1], 64')
    i('v_lshrrev_b32 v1, 6, v0'); i('v_readfirstlane_b32 s3, v1'); i(f'v_and_b32 {vL}, 63, v0')
    i(f's_and_b32 {sH}, s2, 7'); i(f's_lshl_b32 {sH}, {sH}, 1'); i(f's_bfe_u32 {sT}, s2, 0x10003'); i(f's_add_u32 {sH}, {sH}, {sT}')
    i(f's_lshr_b32 {sB}, s2, 6'); i(f's_bfe_u32 {sSP}, s2, 0x20004')
    i(f's_lshl_b32 {sKV}, {sB}, 4'); i(f's_add_u32 {sKV}, {sKV}, {sH}'); i(f's_lshl_b32 {sKV}, {sKV}, 2'); i(f's_add_u32 {sKV}, {sKV}, {sSP}')
    i(f's_lshl_b32 {sKV}, {sKV}, 19'); i(f's_lshl_b32 {sT}, s3, 12'); i(f's_add_u32 {sKV}, {sKV}, {sT}')
    i(f's_mul_i32 {sRING}, s3, {WRING}'); i(f's_add_u32 {sRING}, {sRING}, {RING}')
    i(f's_lshl_b32 {sWQ}, {sH}, 9'); i(f's_lshl_b32 {sT}, s3, 7'); i(f's_add_u32 {sWQ}, {sWQ}, {sT}')
    i(f'v_lshlrev_b32 {vLIN}, 4, {vL}')
    i(f'v_and_b32 v20, 7, {vL}'); i(f'v_lshrrev_b32 v21, 3, {vL}')
    i(f'v_lshlrev_b32 {vK}, 9, v20'); i(f'v_lshl_add_u32 {vK}, v21, 4, {vK}')
    i('v_and_b32 v22, 3, v21'); i('v_lshrrev_b32 v23, 2, v21'); i('v_lshl_add_u32 v22, v23, 3, v22')
    i('v_lshrrev_b32 v23, 1, v21'); i('v_lshlrev_b32 v23, 1, v23'); i('v_xor_b32 v23, v23, v20'); i('v_lshlrev_b32 v23, 4, v23')
    i(f'v_lshl_add_u32 {vWQ}, v22, 13, v23')
    i(f'v_mul_u32_u24 {vF1}, 3584, v22'); i(f'v_add_u32 {vF1}, {vF1}, v23')
    i(f'v_cmp_gt_u32 vcc, 56, {vL}'); i('v_bfrev_b32 v24, 1'); i(f'v_cndmask_b32 v24, v24, {vLIN}, vcc')
    i(f's_add_u32 {sT1}, {sB}, s3'); i(f's_and_b32 {sT1}, {sT1}, 3'); i(f's_mul_i32 {sT1}, {sT1}, 896')
    i('s_waitcnt lgkmcnt(0)')
    if stamps: i('s_mov_b32 s94, s100'); i('s_memrealtime s[100:101]'); i('s_waitcnt lgkmcnt(0)'); i('s_mov_b32 s95, s100')
    srd(X,64,3584); srd(K,66,0x8000000); srd(WQ,70,0 if o.get('nullwq') else 448*4096*2)
    i(f'buffer_load_dwordx4 v[20:23], v24, {X}, {sT1} offen nt',tag='x')
    wp=o['wo_pre']
    wo=[('wo',n) for n in range(16)]
    side=[('wq',s) for s in range(14)]+[('f1',s) for s in range(7)]+wo[:wp]+[('wd',n) for n in range(4)]+wo[wp:]
    sidx={g:n for n,g in enumerate(side)}
    def hbase(g): return SIDE0+(sidx[g]%3)*HALF
    def dma(voff,srdn,sbase,memoff,ldsoff,tag):
        i(f's_add_u32 m0, {sRING}, {ldsoff}'); i(f's_add_u32 {sT}, {sbase}, {memoff}')
        pol=o['vpol'] if srdn==V else o['wpol']
        pol='' if pol=='def' else pol+' '
        i(f'buffer_load_dwordx4 {voff}, {srdn}, {sT} offen {pol}lds',tag=tag)
    RB=[0,16,4,20]
    def side_load(g,sl):
        kind,n=g
        if kind=='wq': dma(vWQ,WQ,sWQ,(32*n+RB[sl])*8192,hbase(g)+sl*SLOT,g)
        elif kind=='f1': dma(vF1,F1,sF1,(32*n+RB[sl])*3584,hbase(g)+sl*SLOT,g)
        elif kind=='wo':
            s,e=n//2,(n%2)*4+sl
            dma(vW4,WO,sWO,(128*(s//4)+16*e+4*(s%4))*896,hbase(g)+sl*SLOT,g)
        elif kind=='wd':
            s,e=n//2,(n%2)*4+sl
            dma(vW4,WD,sWD,(32*s+4*e)*896,hbase(g)+sl*SLOT,g)
    def kreg(T,k):
        if T<4: return vr(32+32*T+4*k,4)
        if T<12: return ar(32*(T-4)+4*k,4)
        return vr(32+32*(T-12)+4*k,4)
    prim=[('k',m) for m in range(96)]+[('v',m) for m in range(8)]+[('k',m) for m in range(96,128)]+[('v',m) for m in range(8,128)]
    st=dict(p=0,s=0,kdone=0,vdone=0,sdone=0)
    def prim_ok():
        if st['p']>=len(prim): return False
        kind,m=prim[st['p']]
        if kind=='k': return m//8<12 or st['kdone']>m//8-12
        return m//8-3<st['vdone']
    def prim_load():
        kind,m=prim[st['p']]; st['p']+=1
        if kind=='k':
            if m%4==0: i(f's_add_u32 {sKO}, {sKV}, {(m//4)*16384}')
            i(f'buffer_load_dwordx4 {kreg(m//8,m%8)}, {vK}, {K}, {sKO} offen offset:{(m%4)*128}'+('' if o['kpol']=='def' else ' '+o['kpol']),tag=('k',m//8))
        else:
            n,e=m//8,m%8
            dma(vV,V,sKV,(2*n+e//4)*16384+(e%4)*1024,(n%3)*GRP+e*SLOT,('v',n))
    def side_ok(): return st['s']<len(side) and st['s']-3<st['sdone']
    credit=[0]
    def quad():
        for _ in range(4): prim_load()
    def batch(np_,withside=True,sidefirst=False):
        g=None
        if withside and side_ok(): g=side[st['s']]; st['s']+=1
        if sidefirst and g:
            for sl in range(4): side_load(g,sl)
            g=None
        credit[0]+=np_
        nq=credit[0]//4
        sl=0; done=0
        for k in range(nq):
            if not prim_ok(): credit[0]=0; break
            quad(); credit[0]-=4; done+=1
            if g:
                upto=4 if k==nq-1 else (4*(k+1))//nq
                while sl<upto: side_load(g,sl); sl+=1
        while g and sl<4: side_load(g,sl); sl+=1
    for _ in range(o['first']):
        batch(o['npb'])
        if stamps and _==0: i('s_memrealtime s[100:101]'); i('s_waitcnt lgkmcnt(0)'); i('s_mov_b32 s64, s94'); i('s_mov_b32 s65, s95'); i('s_mov_b32 s66, s100'); nst[0]+=3
    srd(V,68,0x8000000); srd(WO,72,0 if o.get('nullwo') else 4096*448*2); srd(OUT,82,3584); srd(DBG,84,256); srd(WSP,86,4<<20)
    i(f's_and_b32 {sT}, s2, 7'); i(f's_cmp_eq_u32 {sT}, 7'); i(f's_cselect_b32 {sCB}, 32, s2')
    i(f's_cmp_lt_u32 {sCB}, 32'); i(f's_cselect_b32 s{srd_base(WSC)+2}, {4<<20}, 0'); i(f's_cselect_b32 s{srd_base(DBGC)+2}, 256, 0')
    srd(WSC,86,None); srd(DBGC,84,None)
    i(f's_sub_u32 {sFI}, s2, 32'); i(f's_cmp_lt_u32 {sFI}, 28'); i(f's_cselect_b32 {sFI}, {sFI}, 0')
    fsz=0 if o.get('nullf') else 448*1792*2
    i(f's_cselect_b32 s{srd_base(F1)+2}, {fsz}, 0'); i(f's_cselect_b32 s{srd_base(WD)+2}, {fsz}, 0'); i(f's_cselect_b32 s{srd_base(WSF)+2}, {4<<20}, 0')
    srd(WD,80,None); srd(WSF,86,None)
    i('s_cmp_lt_u32 s3, 2'); i(f's_cselect_b32 s{srd_base(F1)}, s76, s78'); i(f's_cselect_b32 s{srd_base(F1)+1}, s77, s79'); i(f's_mov_b32 s{srd_base(F1)+3}, 0x20000')
    i(f's_and_b32 {sT1}, s3, 1'); i(f's_mul_i32 {sF1}, {sT1}, {224*3584}'); i(f's_lshl_b32 {sT}, {sFI}, 7'); i(f's_add_u32 {sF1}, {sF1}, {sT}')
    i(f's_lshl_b32 {sT2}, s3, 8'); i(f's_mul_i32 {sWO}, {sH}, {256*896}'); i(f's_add_u32 {sWO}, {sWO}, {sT2}')
    i(f's_mul_i32 {sWD}, {sFI}, {64*896}'); i(f's_add_u32 {sWD}, {sWD}, {sT2}')
    i(f's_lshl_b32 {sY}, {sB}, 2'); i(f's_add_u32 {sY}, {sY}, s3'); i(f's_lshl_b32 {sY}, {sY}, 15')
    i(f's_lshl_b32 {sT}, {sH}, 2'); i(f's_add_u32 {sT}, {sT}, {sSP}'); i(f's_lshl_b32 {sT}, {sT}, 6'); i(f's_add_u32 {sY}, {sY}, {sT}')
    i(f's_and_b32 {sT}, s2, 31'); i(f's_lshr_b32 {sCML}, {sT}, 3'); i(f's_lshl_b32 {sT}, {sT}, 2'); i(f's_add_u32 {sT}, {sT}, s3')
    i(f's_lshl_b32 {sCY}, {sT}, 12'); i(f's_lshl_b32 {sCF}, {sT}, 11'); i(f's_add_u32 {sCF}, {sCF}, {FBASE}')
    i(f's_lshl_b32 {sCML}, {sCML}, 9'); i(f's_add_u32 {sCML}, {sCML}, {MLBASE}')
    i(f's_mov_b32 {sC}, 0x3db8aa3b')
    stamp()
    i(f'v_lshrrev_b32 v25, 4, {vL}'); i(f'v_bfe_u32 v26, {vL}, 2, 2'); i(f'v_and_b32 v27, 3, {vL}')
    i(f'v_lshrrev_b32 v28, 5, {vL}'); i('v_lshlrev_b32 v28, 7, v28'); i(f'v_xor_b32 {vV}, v28, {vLIN}')
    i('v_and_b32 v28, 1, v25'); i('v_lshlrev_b32 v29, 3, v28'); i(f'v_and_b32 v30, 15, {vL}'); i('v_xor_b32 v29, v29, v30'); i('v_lshlrev_b32 v29, 4, v29')
    i(f'v_add_u32 v30, {sT2}, v29'); i('v_cmp_gt_u32 vcc, 896, v30'); i(f'v_mul_u32_u24 {vW4}, 896, v25'); i(f'v_add_u32 {vW4}, {vW4}, v29')
    i('v_bfrev_b32 v29, 1'); i(f'v_cndmask_b32 {vW4}, v29, {vW4}, vcc')
    i('v_lshl_add_u32 v29, v28, 2, v26')
    i('v_lshrrev_b32 v30, 1, v25'); i(f'v_mul_u32_u24 v30, {SLOT}, v30'); i('v_lshl_add_u32 v30, v29, 7, v30'); i('v_lshl_add_u32 v30, v27, 3, v30')
    i(f'v_add_u32 v30, {sRING}, v30'); i('v_lshrrev_b32 v29, 1, v29')
    for t in range(4):
        i(f'v_xor_b32 v31, {t}, v29'); i(f'v_lshl_add_u32 {vTW[t]}, v31, 5, v30')
    i(f'v_mul_u32_u24 v30, {SLOT}, v26'); i('v_lshl_add_u32 v30, v25, 8, v30'); i('v_lshl_add_u32 v30, v27, 3, v30'); i(f'v_add_u32 v30, {sRING}, v30')
    i('v_lshlrev_b32 v31, 7, v28'); i(f'v_add_u32 {vT4[0]}, v30, v31'); i(f'v_sub_u32 {vT4[1]}, v30, v31')
    i('v_lshrrev_b32 v30, 1, v26'); i('v_lshl_add_u32 v30, v25, 1, v30'); i(f'v_mul_u32_u24 v30, {SLOT}, v30'); i('v_and_b32 v31, 1, v26')
    i('v_lshl_add_u32 v30, v31, 9, v30'); i('v_lshl_add_u32 v30, v27, 3, v30'); i(f'v_add_u32 v30, {sRING}, v30')
    i('v_lshlrev_b32 v31, 7, v31'); i(f'v_add_u32 {vTV[0]}, v30, v31'); i(f'v_sub_u32 {vTV[1]}, v30, v31')
    i(f'v_mul_u32_u24 {vA}, {XNROW}, v27'); i(f'v_lshl_add_u32 {vA}, v25, 4, {vA}')
    i(f's_mul_i32 {sT1}, {sT1}, 448'); i(f'v_add_u32 {vA2}, {sT1}, {vA}')
    i(f'v_mov_b32 {vMAX}, 0xff800000')
    E.wait_vm('x')
    L=192
    for k in range(4):
        i(f'v_lshlrev_b32 v{L+2*k}, 16, v{20+k}'); i(f'v_and_b32 v{L+1+2*k}, 0xffff0000, v{20+k}')
    a,b_,c_,d_,e_,f_,g_=[f'v{L+8+k}' for k in range(7)]
    i(f'v_add_f32 {a}, v{L}, v{L+1}'); i(f'v_add_f32 {b_}, v{L+2}, v{L+3}'); i(f'v_add_f32 {c_}, v{L+4}, v{L+5}'); i(f'v_add_f32 {d_}, v{L+6}, v{L+7}')
    i(f'v_add_f32 {a}, {a}, {b_}'); i(f'v_add_f32 {c_}, {c_}, {d_}'); i(f'v_add_f32 {a}, {a}, {c_}')
    allsum(a,b_)
    i(f'v_mul_f32 {a}, 0x3b124925, {a}')
    i(f'v_sub_f32 {c_}, v{L}, {a}'); i(f'v_mul_f32 {d_}, {c_}, {c_}')
    for k in range(1,8):
        i(f'v_sub_f32 {c_}, v{L+k}, {a}'); i(f'v_fmac_f32 {d_}, {c_}, {c_}')
    i(f'v_cmp_gt_u32 vcc, 56, {vL}'); i(f'v_cndmask_b32 {d_}, 0, {d_}, vcc')
    allsum(d_,b_)
    i(f'v_mul_f32 {d_}, 0x3b124925, {d_}')
    rnd(a); rnd(d_); i(f'v_add_f32 {d_}, 0x3727c5ac, {d_}'); rnd(d_); i(f'v_sqrt_f32 {d_}, {d_}'); rnd(d_); i(f'v_rcp_f32 {e_}, {d_}')
    for k in range(8): i(f'v_sub_f32 v{L+k}, v{L+k}, {a}')
    for k in range(4):
        i(f'v_cvt_pk_bf16_f32 v{20+k}, v{L+2*k}, v{L+1+2*k}')
        i(f'v_lshlrev_b32 v{L+2*k}, 16, v{20+k}'); i(f'v_and_b32 v{L+1+2*k}, 0xffff0000, v{20+k}')
    for k in range(8):
        i(f'v_mul_f32 {f_}, v{L+k}, {e_}'); i(f'v_fma_f32 {g_}, -{f_}, {d_}, v{L+k}'); i(f'v_fma_f32 v{L+k}, {g_}, {e_}, {f_}')
    for k in range(4): i(f'v_cvt_pk_bf16_f32 v{20+k}, v{L+2*k}, v{L+1+2*k}')
    i(f's_mul_i32 {sT1}, s3, {XNROW}'); i(f'v_add_u32 v24, {sT1}, {vLIN}')
    i('s_mov_b32 exec_hi, 0x00ffffff'); i(f'ds_write_b128 v24, v[20:23] offset:{XN}'); i('s_mov_b32 exec_hi, -1')
    E.wait_ds(); i('s_barrier')
    stamp()
    def consume_side():
        g=side[st['sdone']]; kind,n=g
        E.wait_vm(g)
        if kind in('wq','f1'):
            i(f'ds_read_b128 {vr(AT,4)}, {vA if kind=="wq" else vA2} offset:{XN+n*64}')
            for t in range(4):
                for hh in range(2): i(f'ds_read_b64_tr_b16 {vr(TT+4*t+2*hh,2)}, {vTW[t]} offset:{hbase(g)+2*hh*SLOT}',tag=('r8',t))
            for t in range(4):
                E.wait_ds(('r8',t))
                i(f'v_mfma_f32_16x16x32_bf16 {vr(QACC+4*t,4)}, {vr(AT,4)}, {vr(TT+4*t,4)}, {"0" if n==0 else vr(QACC+4*t,4)}')
        else:
            s,hh=n//2,n%2
            for t in range(8):
                dst=ar((s*8+t)*4+2*hh,2) if kind=='wo' else vr(WDR+(s*8+t)*4+2*hh,2)
                i(f'ds_read_b64_tr_b16 {dst}, {vT4[t//4]} offset:{hbase(g)+t*32}')
            E.wait_ds()
        st['sdone']+=1
    def clears():
        for r in range(4): i(f'v_mov_b32 v{20+r}, -1')
        for k in range(4): i(f'buffer_store_dwordx4 v[20:23], {vLIN}, {WSC}, {sCY} offen offset:{k*1024} {hp}',tag='clr')
        i(f'buffer_store_dwordx4 v[20:23], {vLIN}, {WSC}, {sCF} offen {hp}',tag='clr')
        i(f'v_and_b32 v24, 0x1ff, {vLIN}')
        i(f'buffer_store_dwordx4 v[20:23], v24, {WSC}, {sCML} offen {hp}',tag='clr')
        i(f'v_cmp_gt_u32 vcc, 48, {vL}')
        for r in range(4): i(f'v_cndmask_b32 v{24+r}, 0, v{20+r}, vcc')
        i(f'buffer_store_dwordx4 v[24:27], {vLIN}, {WSC}, {sCF} offen offset:1024 {hp}',tag='clr')
    for s in range(14):
        consume_side(); batch(o['npb'])
        if s==1: clears()
        if s in (4,9): stamp()
        if s==10:
            i('v_mov_b32 v20, 1'); i('s_mov_b64 exec, 1')
            i(f'buffer_atomic_add v20, off, {DBGC}, 0 sc1',tag='atom'); i('s_mov_b64 exec, -1')
    i(f's_lshl_b32 {sT1}, s3, 7'); i(f'v_lshlrev_b32 v24, 1, {vL}'); i(f'v_add_u32 v24, {sT1}, v24')
    i(f'v_cvt_pk_bf16_f32 v20, v{QACC}, v{QACC+4}'); i(f'v_cvt_pk_bf16_f32 v21, v{QACC+8}, v{QACC+12}')
    i('s_mov_b64 exec, 0xffff')
    i(f'ds_write_b16 v24, v20 offset:{QO}'); i(f'ds_write_b16_d16_hi v24, v20 offset:{QO+32}')
    i(f'ds_write_b16 v24, v21 offset:{QO+64}'); i(f'ds_write_b16_d16_hi v24, v21 offset:{QO+96}')
    i('s_mov_b64 exec, -1')
    i(f'v_lshrrev_b32 v24, 3, {vL}'); i('v_lshlrev_b32 v24, 4, v24')
    E.wait_ds(); i('s_barrier')
    for s in range(4): i(f'ds_read_b128 {vr(QF+4*s,4)}, v24 offset:{QO+s*128}',tag='qf')
    E.wait_ds('qf')
    stamp()
    def post(T):
        a=OA+8*(T%2)
        for r in range(4): i(f'v_permlane32_swap_b32 v{a+r}, v{a+4+r}')
        for r in range(4): i(f'v_add_f32_dpp v{a+r}, v{a+4+r}, v{a+r} row_ror:8 {DPP}')
        i(f'v_max3_f32 {vMAX}, v{a}, v{a+1}, {vMAX}'); i(f'v_max3_f32 {vMAX}, v{a+2}, v{a+3}, {vMAX}')
        i(f'v_cvt_pk_bf16_f32 v{SC+2*T}, v{a}, v{a+1}'); i(f'v_cvt_pk_bf16_f32 v{SC+2*T+1}, v{a+2}, v{a+3}')
    pend=[None]
    def ktile():
        T=st['kdone']
        E.wait_vm(('k',T))
        a=OA+8*(T%2)
        for s in range(4):
            for oc in range(2):
                acc=vr(a+4*oc,4)
                i(f'v_mfma_f32_16x16x32_bf16 {acc}, {kreg(T,oc*4+s)}, {vr(QF+4*s,4)}, {"0" if s==0 else acc}')
        if pend[0] is not None: post(pend[0])
        pend[0]=T; st['kdone']+=1
    def k_issued(T): return all(prim.index(('k',m))<st['p'] for m in range(8*T,8*T+8))
    def vm_index(tag): return max(k for k,(t,_) in enumerate(E.vm) if t==tag)
    did_cnt=False
    while st['kdone']<16:
        g=side[st['sdone']]
        can_side = not (g[0]=='wd') and not (g[0]=='wo' and st['kdone']<12)
        n=0
        lim=vm_index(g) if can_side else 10**9
        while st['kdone']<16 and n<o['catch'] and k_issued(st['kdone']) and vm_index(('k',st['kdone']))<lim:
            ktile(); n+=1
            if n==1 or not can_side: batch(o['npb'] if not can_side else 2,withside=False)
        if can_side and st['kdone']<16 or (can_side and g[0]=='f1'):
            consume_side()
            if g==('f1',6):
                i(f's_lshl_b32 {sT1}, s3, 10'); i(f'v_add_u32 v24, {sT1}, {vLIN}')
                i('s_mov_b64 exec, 0xffff')
                for t in range(4): i(f'ds_write_b128 v24, {vr(QACC+4*t,4)} offset:{GU+t*256}')
                i('s_mov_b64 exec, -1')
            batch(o['npb'])
        if st['kdone']>=13 and not did_cnt:
            i(f'buffer_load_dword {vCNT}, off, {DBG}, 0 sc1',tag='cnt'); did_cnt=True
        if st['kdone']==12 and n>0: stamp()
    assert st['sdone']>=21, st
    post(pend[0])
    batch(32,withside=False)
    if o.get('verbose'): print('at softmax',st, 'outstanding',E.outstanding())
    stamp()
    xrow(vMAX,'v20','max'); rnd(vMAX); i(f'v_mul_f32 {vMAX}, {sC}, {vMAX}')
    EE=32
    for k in range(32):
        i(f'v_lshlrev_b32 v{EE+2*k}, 16, v{SC+k}'); i(f'v_and_b32 v{EE+2*k+1}, 0xffff0000, v{SC+k}')
        i(f'v_fma_f32 v{EE+2*k}, v{EE+2*k}, {sC}, -{vMAX}'); i(f'v_fma_f32 v{EE+2*k+1}, v{EE+2*k+1}, {sC}, -{vMAX}')
        i(f'v_exp_f32 v{EE+2*k}, v{EE+2*k}'); i(f'v_exp_f32 v{EE+2*k+1}, v{EE+2*k+1}')
        if k==1: i(f'v_pk_add_f32 v[20:21], {vr(EE,2)}, 0')
        if k>=2: i(f'v_pk_add_f32 v[20:21], v[20:21], {vr(EE+2*(k-1),2)}')
    i(f'v_pk_add_f32 v[20:21], v[20:21], {vr(EE+62,2)}')
    i('v_add_f32 v21, v20, v21'); xrow('v21','v22'); i(f'v_mov_b32 v20, {vMAX}')
    i(f's_lshl_b32 {sT1}, s3, 3'); i(f'v_mov_b32 v22, {sT1}')
    i('s_mov_b64 exec, 1'); i(f'ds_write_b64 v22, v[20:21] offset:{MLO}'); i('s_mov_b64 exec, -1')
    i('v_mov_b32 v22, 0')
    E.wait_ds(); i('s_barrier')
    i(f'ds_read_b128 v[24:27], v22 offset:{MLO}'); i(f'ds_read_b128 v[28:31], v22 offset:{MLO+16}')
    E.wait_ds()
    i('v_max3_f32 v20, v24, v26, v28'); i('v_max_f32 v20, v20, v30')
    i(f'v_sub_f32 v22, {vMAX}, v20'); i('v_exp_f32 v22, v22')
    for k in (24,26,28,30): i(f'v_sub_f32 v{k}, v{k}, v20'); i(f'v_exp_f32 v{k}, v{k}')
    i('v_mov_b32 v23, v22')
    i('v_mul_f32 v21, v24, v25'); i('v_fmac_f32 v21, v26, v27'); i('v_fmac_f32 v21, v28, v29'); i('v_fmac_f32 v21, v30, v31')
    for k in range(32):
        i(f'v_pk_mul_f32 {vr(EE+2*k,2)}, {vr(EE+2*k,2)}, v[22:23]')
        i(f'v_cvt_pk_bf16_f32 v{SC+k}, v{EE+2*k}, v{EE+2*k+1}')
    stamp()
    def vstep():
        n=st['vdone']; g=('v',n)
        E.wait_vm(g)
        for t in range(16):
            i(f'ds_read_b64_tr_b16 {vr(TV+2*t,2)}, {vTV[(t//4)%2]} offset:{(n%3)*GRP+t*32}',tag=('rv',n,t))
        for t in range(16):
            if t%4==0: E.wait_ds(('rv',n,t+3))
            acc=vr(PV+4*t,4)
            i(f'v_mfma_f32_16x16x16_bf16 {acc}, {vr(SC+2*n,2)}, {vr(TV+2*t,2)}, {"0" if n==0 else acc}')
        st['vdone']+=1
        if n<15:
            first=min(k for k,(t,_) in enumerate(E.vm) if t==('v',n+1))
            while st['sdone']<st['s'] and vm_index(side[st['sdone']])<first+o.get('slack',0): consume_side()
        while side_ok(): batch(0,sidefirst=True)
        batch(8,withside=False)
    vstep(); vstep()
    E.wait_vm('cnt')
    i(f's_mov_b32 {sTMO}, 0x40000')
    E.label('L_cnt')
    i(f'v_readfirstlane_b32 {sT1}, {vCNT}'); i(f's_cmp_ge_u32 {sT1}, 112'); i('s_cbranch_scc1 L_cnt_ok')
    i(f's_sub_u32 {sTMO}, {sTMO}, 1'); i('s_cbranch_scc1 L_cnt_ok')
    E.raw(f'    s_sleep 4\n    buffer_load_dword {vCNT}, off, {DBG}, 0 sc1\n    s_waitcnt vmcnt(0)\n    s_branch L_cnt')
    E.label('L_cnt_ok')
    i(f's_lshr_b32 {sT1}, {sKV}, 19'); i(f's_lshl_b32 {sT1}, {sT1}, 3'); i(f's_add_u32 {sT1}, {sT1}, {MLBASE}')
    i('s_mov_b64 exec, 1'); i(f'buffer_store_dwordx2 v[20:21], off, {WSP}, {sT1} {hp}',tag='ml'); i('s_mov_b64 exec, -1')
    G=224
    for k in range(4): i(f'ds_read_b128 {vr(G+4*k,4)}, {vLIN} offset:{GU+k*1024}',tag='gu')
    i(f'v_lshrrev_b32 v22, 5, {vL}'); i('v_lshlrev_b32 v22, 6, v22'); i(f'v_and_b32 v23, 3, {vL}'); i('v_lshl_add_u32 v22, v23, 4, v22')
    i(f'v_bfe_u32 v24, {vL}, 2, 3'); i('v_lshl_add_u32 v22, v24, 1, v22'); i(f's_mul_i32 {sT1}, s3, 768'); i(f'v_add_u32 v22, {sT1}, v22')
    i('v_mul_u32_u24 v23, 192, v23'); i(f'v_lshrrev_b32 v24, 4, {vL}'); i('v_lshl_add_u32 v23, v24, 4, v23'); i(f'v_add_u32 v23, {sT1}, v23')
    E.wait_ds('gu')
    for r in range(4):
        i(f'v_add_f32 v{G+r}, v{G+r}, v{G+4+r}'); i(f'v_add_f32 v{G+8+r}, v{G+8+r}, v{G+12+r}')
        rnd(f'v{G+r}'); rnd(f'v{G+8+r}'); i(f'v_mul_f32 v{G+r}, v{G+r}, v{G+8+r}')
    i(f'v_cvt_pk_bf16_f32 v{G}, v{G}, v{G+1}'); i(f'v_cvt_pk_bf16_f32 v{G+1}, v{G+2}, v{G+3}')
    i(f'ds_write_b16 v22, v{G} offset:{HO}'); i(f'ds_write_b16_d16_hi v22, v{G} offset:{HO+192}')
    i(f'ds_write_b16 v22, v{G+1} offset:{HO+384}'); i(f'ds_write_b16_d16_hi v22, v{G+1} offset:{HO+576}')
    E.wait_ds()
    i(f'ds_read_b128 v[24:27], v23 offset:{HO}'); i(f'ds_read_b128 v[28:31], v23 offset:{HO+64}')
    vYO,vFO='v2','v4'
    i(f'v_bfe_u32 v20, {vL}, 2, 2'); i(f'v_and_b32 v21, 3, {vL}'); i('v_lshlrev_b32 v21, 4, v21')
    i(f'v_lshl_add_u32 {vYO}, v20, 12, v21'); i(f'v_lshl_add_u32 {vFO}, v20, 11, v21')
    E.wait_ds()
    while st['sdone']<=sidx[('wd',3)]: vstep()
    if o.get('verbose'): print('at ffn2',st)
    for s in range(2):
        for t in range(8):
            acc=vr(FA+4*t,4)
            i(f'v_mfma_f32_16x16x32_bf16 {acc}, {vr(24+4*s,4)}, {vr(WDR+(s*8+t)*4,4)}, {"0" if s==0 else acc}')
    for t in range(8):
        for r in range(4): i(f'v_mov_b32 v{128+r*8+t}, v{FA+4*t+r}')
    i('s_mov_b64 exec, 0xffff')
    for r in range(4):
        i(f's_add_u32 {sT1}, {sB}, {r}'); i(f's_and_b32 {sT1}, {sT1}, 3'); i(f's_lshl_b32 {sT1}, {sT1}, 2'); i(f's_add_u32 {sT1}, {sT1}, s3')
        i(f's_lshl_b32 {sT1}, {sT1}, 14'); i(f's_lshl_b32 {sT2}, {sFI}, 6'); i(f's_add_u32 {sT1}, {sT1}, {sT2}'); i(f's_add_u32 {sT1}, {sT1}, {FBASE}')
        i(f'buffer_store_dwordx4 {vr(128+r*8,4)}, {vFO}, {WSF}, {sT1} offen {hp}',tag='fst')
        i(f's_add_u32 {sT1}, {sT1}, 8192')
        i(f'buffer_store_dwordx4 {vr(128+r*8+4,4)}, {vFO}, {WSF}, {sT1} offen {hp}',tag='fst')
    i('s_mov_b64 exec, -1')
    stamp()
    while st['vdone']<o['pre_at']: vstep()
    vML,vXO='v5','v9'
    i(f'v_lshrrev_b32 {vML}, 2, {vL}'); i(f'v_lshlrev_b32 {vML}, 3, {vML}')
    i(f'v_bfe_u32 v20, {vL}, 4, 1'); i(f'v_bfe_u32 v21, {vL}, 5, 1'); i('v_lshl_add_u32 v20, v20, 1, v21')
    i(f's_and_b32 {sT1}, s2, 7'); i(f's_lshl_b32 {sT1}, {sT1}, 6'); i(f's_lshl_b32 {sT2}, s3, 2'); i(f's_add_u32 {sT1}, {sT1}, {sT2}')
    i(f's_bfe_u32 {sT2}, s2, 0x20003'); i(f's_mul_i32 {sT2}, {sT2}, 448'); i(f's_add_u32 {sT1}, {sT1}, {sT2}')
    i(f'v_and_b32 v21, 15, {vL}'); i(f'v_lshl_add_u32 {vXO}, v20, 4, v21'); i(f'v_add_u32 {vXO}, {sT1}, {vXO}'); i(f'v_lshlrev_b32 {vXO}, 1, {vXO}')
    i('v_cmp_gt_u32 vcc, 4, v21'); i('v_bfrev_b32 v20, 1'); i(f'v_cndmask_b32 {vXO}, v20, {vXO}, vcc')
    def preloads(ii):
        for k in range(4): ii(f'buffer_load_dwordx2 {vr(160+2*k,2)}, {vML}, {WSC}, {sCML} offen offset:{k*128} {hp}')
        for k in range(2): ii(f'buffer_load_dwordx4 {vr(168+4*k,4)}, {vLIN}, {WSC}, {sCF} offen offset:{k*1024} {hp}')
    preloads(lambda t:i(t,tag='pre'))
    i(f'buffer_load_ushort v176, {vXO}, {X}, 0 offen nt',tag='pre')
    vstep(); vstep(); vstep()
    E.wait_vm('pre')
    i(f's_cmp_ge_u32 {sCB}, 32'); i('s_cbranch_scc1 L_pre_done')
    i(f's_mov_b32 {sTMO}, 0x40000')
    E.label('L_pre')
    WT=178
    for k in range(4):
        m,l=160+2*k,161+2*k
        i(f'v_max_f32_dpp v20, v{m}, v{m} row_ror:4 {DPP}'); i(f'v_max_f32_dpp v20, v20, v20 row_ror:8 {DPP}')
        i(f'v_sub_f32 v20, v{m}, v20'); i('v_exp_f32 v20, v20'); i(f'v_mul_f32 v21, v20, v{l}')
        i(f'v_add_f32_dpp v21, v21, v21 row_ror:4 {DPP}'); i(f'v_add_f32_dpp v21, v21, v21 row_ror:8 {DPP}')
        i('v_rcp_f32 v21, v21'); i(f'v_mul_f32 v{WT+k}, v20, v21')
    for r in range(4): i(f'v_add_f32 v{24+r}, v{168+r}, v{172+r}')
    red4(24)
    i(f'v_add_f32 v20, v{WT}, v{WT+1}'); i(f'v_add_f32 v21, v{WT+2}, v{WT+3}'); i('v_add_f32 v20, v20, v21')
    i('v_cmp_u_f32 vcc, v20, v24'); i('s_cmp_eq_u64 vcc, 0'); i('s_cbranch_scc1 L_pre_ok')
    i(f's_sub_u32 {sTMO}, {sTMO}, 1'); i('s_cbranch_scc1 L_pre_ok')
    E.raw('    s_sleep 4'); preloads(lambda t:E.raw('    '+t)); E.raw('    s_waitcnt vmcnt(0)\n    s_branch L_pre')
    E.label('L_pre_ok')
    rnd('v24'); i('v_mul_f32 v20, 0xbfb8aa3b, v24'); i('v_exp_f32 v20, v20'); i('v_add_f32 v20, 1.0, v20'); i('v_rcp_f32 v20, v20')
    i(f'v_mul_f32 v{WT+4}, v24, v20'); rnd(f'v{WT+4}'); i('v_lshlrev_b32 v176, 16, v176')
    E.label('L_pre_done')
    i('s_nop 1')
    vOW,vOA='v7','v8'
    i(f's_mul_i32 {sT1}, s3, {ORROW}'); i(f'v_add_u32 {vOW}, {sT1}, {vLIN}')
    i(f'v_and_b32 v20, 3, {vL}'); i(f'v_mul_u32_u24 {vOA}, {ORROW}, v20'); i(f'v_lshrrev_b32 v20, 4, {vL}'); i(f'v_lshl_add_u32 {vOA}, v20, 4, {vOA}')
    i(f's_add_u32 {sT2}, {sY}, 16384')
    while st['vdone']<16:
        if st['vdone']==15:
            assert st['sdone']==len(side), st
            stamp()
        vstep()
    stamp()
    for k in range(8): i(f'v_cvt_pk_bf16_f32 v{128+k}, v{PV+8*k}, v{PV+8*k+4}')
    i('s_mov_b64 exec, 0xffff')
    i(f'ds_write_b128 {vOW}, v[128:131] offset:{ORO}'); i(f'ds_write_b128 {vOW}, v[132:135] offset:{ORO+256}')
    i('s_mov_b64 exec, -1')
    E.wait_ds(); i('s_barrier')
    for s in range(8): i(f'ds_read_b128 {vr(96+4*s,4)}, {vOA} offset:{ORO+s*64}',tag=('oa',s))
    for hf in range(2):
        for s in range(8):
            E.wait_ds(('oa',s))
            for t in range(4*hf,4*hf+4):
                acc=vr(FA+4*t,4)
                i(f'v_mfma_f32_16x16x32_bf16 {acc}, {vr(96+4*s,4)}, {ar((s*8+t)*4,4)}, {"0" if s==0 else acc}')
            if hf==1 and s==2:
                for t in range(4): i(f'v_pk_add_f32 {vr(FA+4*t,2)}, {vr(FA+4*t,2)}, {vr(FA+4*t+2,2)}')
            if hf==1 and s==3:
                for t in range(4): i(f'v_add_f32 v{24+t}, v{FA+4*t}, v{FA+4*t+1}')
                i('s_mov_b64 exec, 0xffff')
                i(f'buffer_store_dwordx4 v[24:27], {vYO}, {WSP}, {sY} offen {hp}',tag='y')
                i('s_mov_b64 exec, -1')
    for t in range(4,8): i(f'v_pk_add_f32 {vr(FA+4*t,2)}, {vr(FA+4*t,2)}, {vr(FA+4*t+2,2)}')
    for t in range(4,8): i(f'v_add_f32 v{24+t}, v{FA+4*t}, v{FA+4*t+1}')
    i('s_mov_b64 exec, 0xffff')
    i(f'buffer_store_dwordx4 v[28:31], {vYO}, {WSP}, {sT2} offen {hp}',tag='y')
    i('s_mov_b64 exec, -1')
    stamp()
    i(f's_cmp_ge_u32 {sCB}, 32'); i('s_cbranch_scc1 L_fin')
    i(f's_mov_b32 {sTMO}, 0x40000')
    E.label('L_poll')
    for k in range(4): i(f'buffer_load_dwordx4 {vr(128+4*k,4)}, {vLIN}, {WSC}, {sCY} offen offset:{k*1024} {hp}',tag=('yl',k))
    for k in range(4):
        E.wait_vm(('yl',k))
        for r in range(4):
            if k==0: i(f'v_mul_f32 v{144+r}, v{WT}, v{128+r}')
            else: i(f'v_fmac_f32 v{144+r}, v{WT+k}, v{128+4*k+r}')
    red4(144)
    i('v_cmp_u_f32 vcc, v144, v144'); i('s_cmp_eq_u64 vcc, 0'); i('s_cbranch_scc1 L_poll_ok')
    i(f's_sub_u32 {sTMO}, {sTMO}, 1'); i('s_cbranch_scc0 L_poll')
    E.label('L_poll_ok')
    rnd('v144'); i(f'v_mul_f32 v144, v144, v{WT+4}'); rnd('v144'); i('v_add_f32 v144, v144, v176'); i('v_cvt_pk_bf16_f32 v144, v144, v144')
    i(f'buffer_store_short v144, {vXO}, {OUT}, 0 offen')
    if 'ea' in o:
        stamp(); nst[0]-=1
        i(f's_sub_u32 {sT1}, s{64+o["eb"]}, s{64+o["ea"]}'); i(f's_min_u32 {sT1}, {sT1}, 20000'); i(f's_mov_b32 {sT2}, s100')
        E.raw(f'L_echo:\n    s_memrealtime s[100:101]\n    s_waitcnt lgkmcnt(0)\n    s_sub_u32 s100, s100, {sT2}\n    s_cmp_lt_u32 s100, {sT1}\n    s_cbranch_scc1 L_echo')
    E.label('L_fin')
    stamp()
    if stamps:
        i(f's_lshl_b32 {sT1}, s2, 2'); i(f's_add_u32 {sT1}, {sT1}, s3'); i(f's_lshl_b32 {sT1}, {sT1}, 6'); i(f's_add_u32 {sT1}, {sT1}, {STBASE}')
        i('s_mov_b64 exec, 1')
        for k in range(nst[0]):
            i(f'v_mov_b32 v20, s{64+k}'); i(f'buffer_store_dword v20, off, {WSP}, {sT1} offset:{4*k}')
        if o.get('verbose'): print('nstamps',nst[0])
    E.label('L_end')
    i('s_endpgm')
    E.raw(f'''.section .rodata,"a"
.p2align 6
.amdhsa_kernel {name}
  .amdhsa_next_free_vgpr 512
  .amdhsa_next_free_sgpr 102
  .amdhsa_accum_offset 256
  .amdhsa_group_segment_fixed_size 0
  .amdhsa_kernarg_size 96
  .amdhsa_user_sgpr_count 2
  .amdhsa_user_sgpr_kernarg_segment_ptr 1
  .amdhsa_system_sgpr_workgroup_id_x 1
  .amdhsa_float_denorm_mode_32 3
.end_amdhsa_kernel''')
    if o.get('verbose'):
        seq=''.join({'k':'K','v':'V','wq':'q','f1':'f','wo':'o','wd':'d'}.get(t[0] if isinstance(t,tuple) else t,'.') for t,_ in E.vm)
        print(seq)
    return E.text()
if __name__=='__main__':
    from mk import build
    t=gen(opts=dict(verbose=True))
    open('recurrent_scan__mha_block_cached__glu_gated_bilinear__decode.s','w').write(t)
    build(t,NAME,'main'); build(gen(stamps=True,opts=dict(verbose=True)),NAME,'main_st')
    print('lds',LDS_BYTES,'lines',t.count('\n'))
```

```python
import sys, json
from gen2 import gen, NAME, LDS_BYTES
from mk import build
names=[]
for spec in sys.argv[1:]:
    n,_,kv=spec.partition(':')
    o={}
    for p in kv.split(','):
        if p:
            k,v=p.split('=')
            try: v=int(v)
            except: v=v.replace('_',' ')
            o[k]=v
    st=o.pop('st',0)
    t=gen(stamps=bool(st),opts=o)
    open(n+'.s','w').write(t)
    build(t,NAME,n); names.append(n)
print(LDS_BYTES, ' '.join(names))
print(', '.join(f'"work/{n}.co"' for n in names))
```

```python
import re
TRANS=('v_exp_f32','v_log_f32','v_rcp_f32','v_rsq_f32','v_sqrt_f32','v_sin_f32','v_cos_f32')
def regs_of(tok):
    tok=tok.strip()
    tok=tok.lstrip('-')
    m=re.match(r'abs\((.*)\)$',tok)
    if m: tok=m.group(1)
    m=re.match(r'([vas])\[(\d+):(\d+)\]$',tok)
    if m: return [(m.group(1),i) for i in range(int(m.group(2)),int(m.group(3))+1)]
    m=re.match(r'([vas])(\d+)$',tok)
    if m: return [(m.group(1),int(m.group(2)))]
    if tok in('vcc','exec','m0'): return [(tok,0)]
    return []
class Emit:
    def __init__(s):
        s.L=[]; s.pos=0; s.hist=[]
        s.vm=[]; s.vm_done=0
        s.ds=[]; s.ds_done=0
        s.nops=0; s.count_stores=False
    def raw(s,t): s.L.append(t)
    def comment(s,t): s.L.append('    ; '+t)
    def label(s,n): s.L.append(n+':')
    def _classify(s,text):
        parts=text.split(None,1); op=parts[0]; rest=parts[1] if len(parts)>1 else ''
        ops=[o.strip() for o in rest.split(',')]
        ops=[(x.split()[0] if x.split() else x) for x in ops]
        R=[regs_of(o) for o in ops]
        d=dict(op=op,kind='other',w=set(),r=set(),A=set(),B=set(),C=set(),wide=False,dpp=False,lds=False)
        flat=lambda l:set(x for y in l for x in y)
        if op.startswith('v_mfma'):
            d.update(kind='mfma',w=set(R[0]),A=set(R[1]),B=set(R[2]),C=set(R[3]),r=flat(R[1:]))
        elif op.startswith('v_'):
            d['kind']='valu'; d['w']=set(R[0]); d['r']=flat(R[1:])
            if 'permlane' in op: d['w']=flat(R[:2]); d['r']=flat(R[:2]); d['perm']=True
            if op.startswith(('v_fmac','v_dot2c','v_pk_fmac')) : d['r']|=set(R[0])
            if '_dpp' in op: d['dpp']=True; d['r']|=set(R[0])
            if op.startswith(TRANS): d['trans']=True
            if op.startswith(('v_readlane','v_readfirstlane')): d['rl']=True
            if op.startswith('v_cndmask') and len(ops)==3: d['r'].add(('vcc',0))
        elif op.startswith('ds_read') or op.startswith('ds_bpermute') or op.startswith('ds_swizzle'):
            d.update(kind='ds',w=set(R[0]),r=flat(R[1:]))
        elif op.startswith('ds_'):
            d.update(kind='ds',r=flat(R))
        elif op.startswith('buffer_load') or op.startswith('global_load'):
            if re.search(r'\blds\b',text): d.update(kind='vmem',r=flat(R)|{('m0',0)},lds=True)
            else: d.update(kind='vmem',w=set(R[0]),r=flat(R[1:]))
        elif op.startswith('buffer_') or op.startswith('global_'):
            d.update(kind='vmem',r=flat(R),store=True)
            if 'x4' in op or 'x3' in op: d['wide']=True; d['data']=set(R[0])
        elif op.startswith('s_'):
            d['kind']='salu'
            if not op.startswith(('s_cmp','s_cbranch','s_branch','s_waitcnt','s_nop','s_barrier','s_endpgm','s_sleep','s_setprio')):
                d['w']=set(R[0]); d['r']=flat(R[1:])
            else: d['r']=flat(R)
        return d
    def _need(s,p,c):
        n=0
        vg=lambda S:set(x for x in S if x[0] in 'va' and len(x[0])==1)
        sg=lambda S:set(x for x in S if x[0] in('s','vcc'))
        if p['kind']=='valu':
            pw=vg(p['w']); ps=sg(p['w'])
            if c['kind']=='mfma' and pw&c['r']: n=max(n,2)
            if c['kind']=='valu':
                if c['dpp'] and pw&c['r']: n=max(n,2)
                if c.get('perm') and pw&c['r']: n=max(n,2)
                if c.get('rl') and pw&c['r']: n=max(n,1)
                if p.get('trans') and pw&c['r']: n=max(n,1)
                if ps&c['r']: n=max(n,4 if c.get('rl') else 2)
            if p.get('trans') and c['kind'] in('ds','vmem') and pw&c['r']: n=max(n,1)
            if c['kind']=='vmem' and ps&c['r']: n=max(n,5)
            if c['kind']=='salu' and ps&c['r']: n=max(n,1)
        if p['kind']=='mfma':
            D=p['w']
            if c['kind']=='mfma':
                if D&(c['A']|c['B']): n=max(n,8)
                if D&c['C'] and (c['C']!=D or c['op']!=p['op']): n=max(n,6)
                if D&c['w'] and not (D&c['C']): n=max(n,8)
            elif c['kind'] in('valu','ds','vmem'):
                if D&(c['r']|c['w']): n=max(n,8)
            if c['kind']=='valu' and p['C']&c['w']: n=max(n,3)
        if p['kind']=='salu' and ('m0',0) in p['w'] and c['lds']: n=max(n,1)
        if p['kind']=='vmem' and p['wide'] and p['data']&c['w']: n=max(n,2)
        return n
    def i(s,text,tag=None):
        c=s._classify(text)
        need=0
        for (pp,p) in s.hist:
            k=s._need(p,c)-(s.pos-pp-1)
            need=max(need,k)
        if need>0:
            s.L.append(f'    s_nop {need-1}'); s.pos+=need; s.nops+=1
        s.L.append('    '+text)
        s.hist.append((s.pos,c)); s.hist=s.hist[-12:]
        m=re.match(r's_nop (\d+)',text)
        s.pos+= (int(m.group(1))+1) if m else 1
        if c['kind']=='vmem': s.vm.append((tag,c.get('store',False)))
        if c['kind']=='ds': s.ds.append(tag)
    def many(s,text):
        for t in text.strip().split('\n'):
            t=t.strip()
            if t: s.i(t)
    def wait_vm(s,tag):
        idx=max(k for k,(t,_) in enumerate(s.vm) if t==tag)
        if idx<s.vm_done: return
        n=sum(1 for (t,st) in s.vm[idx+1:] if (not st) or (s.count_stores and t!='opt'))
        s.i(f's_waitcnt vmcnt({min(n,63)})')
        s.vm_done=idx+1
    def wait_vm_all(s):
        s.i('s_waitcnt vmcnt(0)'); s.vm_done=len(s.vm)
    def wait_ds(s,tag=None):
        if tag is None:
            if s.ds_done<len(s.ds): s.i('s_waitcnt lgkmcnt(0)'); s.ds_done=len(s.ds)
            return
        idx=max(k for k,t in enumerate(s.ds) if t==tag)
        if idx<s.ds_done: return
        n=len(s.ds)-1-idx
        s.i(f's_waitcnt lgkmcnt({min(n,15)})')
        s.ds_done=idx+1
    def outstanding(s): return len(s.vm)-s.vm_done
    def text(s): return '\n'.join(s.L)+'\n'
```

```python
import sys
from emit import Emit
NAME='recurrent_scan__mha_block_cached__glu_gated_bilinear__decode_kernel'
HDR=open('recurrent_scan__mha_block_cached__glu_gated_bilinear__decode.s.ref').read().split('; Override launch')[0]
XN=0; XNROW=960; QO=3840; MLO=4352; GU=4416; HO=0; ORO=8512; ORROW=576; RING=10816
SLOT=1056; HALF=4*SLOT; GRP=8*SLOT; WRING=36*SLOT; LDS_BYTES=RING+4*WRING
SIDE0=3*GRP
FBASE=512<<10; MLBASE=1536<<10; STBASE=1<<20; G1BASE=2<<20
X,K,V,WQ,WO,F1,WD,OUT,DBG,WSP,WSC,WSF,DBGC=[f's[{8+4*i}:{11+4*i}]' for i in range(13)]
sG1='s100'
def srd_base(n): return int(n[2:].split(':')[0])
sB,sH,sSP,sKV='s4','s5','s6','s7'
sT,sRING,sWQ,sWO='s60','s61','s62','s63'
sF1,sWD,sT1,sT2,sY,sTMO,sC,sCY,sCF,sCML,sFI,sCB='s88','s89','s90','s91','s92','s93','s94','s95','s96','s97','s98','s99'
sKO='s101'
vL,vK,vV,vWQ,vF1,vW4='v1','v2','v3','v4','v5','v6'
vTW=['v7','v8','v9','v10']; vT4=['v11','v12']; vTV=['v13','v14']; vA='v15'; vLIN='v16'; vA2='v17'; vMAX='v18'; vCNT='v19'
def vr(a,n): return f'v[{a}:{a+n-1}]' if n>1 else f'v{a}'
def ar(a,n): return f'a[{a}:{a+n-1}]'
DPP='row_mask:0xf bank_mask:0xf'
QF=160; QG=168; QACC=176; SC=192; OA=224; TT=240; AT=28; PV=32; TV=96; FA=224; FACC=192; QPBASE=2<<20
vMB='v0'; vLS=20

def gen(stamps=False, name=NAME, opts=None):
    o=dict(D=12, wq_end=96, clr_at=24, atom_at=48, cnt_at=70, g1_at=86, gg_at=140, wd_pos=6, hpol='sc1', kpol='nt', vpol='nt', wpol='def', G=1, side0=100, side_end=236, pre_ld=212, pre_do=228, D0=12, xat=4, kp='k256', qatom=0, qcnt_n=46, nA=12); o.update(opts or {})
    hp=o['hpol']; TMO=o.get('tmo',0x40000)
    E=Emit(); i=E.i; E.count_stores=bool(o.get('cs',1))
    nst=[0]
    def stamp(early=False):
        if not stamps: return
        if (o.get('early',0) or False)!=early or nst[0]>=16: return
        i('s_memrealtime vcc'); i('s_waitcnt lgkmcnt(0)'); E.ds_done=len(E.ds)
        i(f's_mov_b32 s{64+nst[0]}, vcc_lo'); nst[0]+=1
    def srd(n,p,nrec):
        b=srd_base(n)
        i(f's_mov_b32 s{b}, s{p}'); i(f's_mov_b32 s{b+1}, s{p+1}')
        if nrec is not None: i(f's_mov_b32 s{b+2}, {nrec}')
        i(f's_mov_b32 s{b+3}, 0x20000')
    def rnd(v): i(f'v_cvt_pk_bf16_f32 {v}, {v}, {v}'); i(f'v_and_b32 {v}, 0xffff0000, {v}')
    def xrow(v,t,op='add'):
        i(f'v_mov_b32 {t}, {v}'); i(f'v_permlane16_swap_b32 {t}, {v}'); i(f'v_{op}_f32 {v}, {v}, {t}')
        i(f'v_mov_b32 {t}, {v}'); i(f'v_permlane32_swap_b32 {t}, {v}'); i(f'v_{op}_f32 {v}, {v}, {t}')
    def allsum(v,t,op='add'):
        for r in (1,2,4,8): i(f'v_{op}_f32_dpp {v}, {v}, {v} row_ror:{r} {DPP}')
        xrow(v,t,op)
    def red4(a):
        i(f'v_permlane32_swap_b32 v{a}, v{a+1}'); i(f'v_permlane32_swap_b32 v{a+2}, v{a+3}')
        i(f'v_add_f32 v{a}, v{a}, v{a+1}'); i(f'v_add_f32 v{a+2}, v{a+2}, v{a+3}')
        i(f'v_permlane16_swap_b32 v{a}, v{a+2}'); i(f'v_add_f32 v{a}, v{a}, v{a+2}')
        i(f'v_add_f32_dpp v{a}, v{a}, v{a} row_ror:4 {DPP}'); i(f'v_add_f32_dpp v{a}, v{a}, v{a} row_ror:8 {DPP}')
    E.raw(HDR.rstrip('\n'))
    E.raw(f'; @launch grid=(256,1,1) block=(256,1,1) lds={LDS_BYTES}')
    E.raw(f'.amdgcn_target "amdgcn-amd-amdhsa--gfx950"\n.text\n.globl {name}\n.p2align 8\n.type {name},@function\n{name}:')
    i('s_cmp_ge_u32 s2, 256'); i('s_cbranch_scc1 L_end')
    if stamps: i('s_memrealtime s[100:101]')
    i('s_load_dwordx16 s[64:79], s[0:1], 0'); i('s_load_dwordx8 s[80:87], s[0:1], 64')
    i('v_lshrrev_b32 v1, 6, v0'); i('v_readfirstlane_b32 s3, v1'); i(f'v_and_b32 {vL}, 63, v0')
    if o.get('map',2)==0:
        i(f's_and_b32 {sH}, s2, 7'); i(f's_lshl_b32 {sH}, {sH}, 1'); i(f's_bfe_u32 {sT}, s2, 0x10003'); i(f's_add_u32 {sH}, {sH}, {sT}')
        i(f's_lshr_b32 {sB}, s2, 6'); i(f's_bfe_u32 {sSP}, s2, 0x20004')
    elif o.get('map',2)==1:
        i(f's_bfe_u32 {sH}, s2, 0x40002'); i(f's_lshr_b32 {sB}, s2, 6'); i(f's_and_b32 {sSP}, s2, 3')
    else:
        i(f's_and_b32 {sH}, s2, 15'); i(f's_bfe_u32 {sB}, s2, 0x20004'); i(f's_lshr_b32 {sSP}, s2, 6')
    i(f's_lshl_b32 {sKV}, {sB}, 4'); i(f's_add_u32 {sKV}, {sKV}, {sH}'); i(f's_lshl_b32 {sKV}, {sKV}, 2'); i(f's_add_u32 {sKV}, {sKV}, {sSP}')
    i(f's_lshl_b32 {sKV}, {sKV}, 19'); i(f's_lshl_b32 {sT}, s3, 12'); i(f's_add_u32 {sKV}, {sKV}, {sT}')
    i(f's_mul_i32 {sRING}, s3, {WRING}'); i(f's_add_u32 {sRING}, {sRING}, {RING}')
    i(f's_lshl_b32 {sWQ}, {sH}, 9'); i(f's_lshl_b32 {sT}, s3, 7'); i(f's_add_u32 {sWQ}, {sWQ}, {sT}')
    i(f'v_lshlrev_b32 {vLIN}, 4, {vL}')
    i(f'v_and_b32 v20, 7, {vL}'); i(f'v_lshrrev_b32 v21, 3, {vL}')
    kp=o.get('kp','k128')
    if kp=='k128':
        i(f'v_lshlrev_b32 {vK}, 9, v20'); i(f'v_lshl_add_u32 {vK}, v21, 4, {vK}'); KOFF=[0,128,256,384]
    elif kp=='k256':
        i(f'v_bfe_u32 v22, {vL}, 2, 2'); i(f'v_lshlrev_b32 {vK}, 9, v22'); i(f'v_lshrrev_b32 v22, 4, {vL}'); i(f'v_lshl_add_u32 {vK}, v22, 6, {vK}')
        i(f'v_and_b32 v22, 3, {vL}'); i(f'v_lshl_add_u32 {vK}, v22, 4, {vK}'); KOFF=[0,256,2048,2304]
    elif kp=='kperm':
        i(f'v_bfe_u32 v22, {vL}, 3, 1'); i(f'v_lshlrev_b32 {vK}, 9, v22'); i(f'v_lshrrev_b32 v22, 4, {vL}'); i(f'v_lshl_add_u32 {vK}, v22, 7, {vK}')
        i(f'v_lshl_add_u32 {vK}, v20, 4, {vK}'); KOFF=[0,1024,2048,3072]
    i('v_and_b32 v22, 3, v21'); i('v_lshrrev_b32 v23, 2, v21'); i('v_lshl_add_u32 v22, v23, 3, v22')
    i('v_lshrrev_b32 v23, 1, v21'); i('v_lshlrev_b32 v23, 1, v23'); i('v_xor_b32 v23, v23, v20'); i('v_lshlrev_b32 v23, 4, v23')
    i(f'v_lshl_add_u32 {vWQ}, v22, 13, v23')
    i(f'v_mul_u32_u24 {vF1}, 3584, v22'); i(f'v_add_u32 {vF1}, {vF1}, v23')
    i(f'v_cmp_gt_u32 vcc, 56, {vL}'); i('v_bfrev_b32 v24, 1'); i(f'v_cndmask_b32 v24, v24, {vLIN}, vcc')
    i(f's_add_u32 {sT1}, {sB}, s3'); i(f's_and_b32 {sT1}, {sT1}, 3'); i(f's_mul_i32 {sT1}, {sT1}, 896')
    i('s_waitcnt lgkmcnt(0)')
    if stamps: i('s_mov_b32 s94, s100'); i('s_memrealtime s[100:101]'); i('s_waitcnt lgkmcnt(0)'); i('s_mov_b32 s95, s100')
    srd(X,64,3584); srd(K,66,0x8000000); srd(WQ,70,0 if o.get('nullwq') else 448*4096*2)
    def xload(): i(f'buffer_load_dwordx4 v[20:23], v24, {X}, {sT1} offen nt',tag='x')
    def pretouch():
        i('s_load_dword s101, s[64:65], 0'); i('s_load_dword s101, s[70:71], 0')
        i(f's_mov_b32 s93, 0x200000'); i('s_load_dword s101, s[70:71], s93')
        i(f's_load_dword s101, s[68:69], {sKV}')
        i('s_load_dword s101, s[86:87], 0'); i('s_load_dword s101, s[86:87], s93'); i('s_load_dword s101, s[84:85], 0'); i('s_load_dword s101, s[82:83], 0')
        i('s_load_dword s101, s[72:73], 0'); i('s_load_dword s101, s[72:73], s93')
        i('s_load_dword s101, s[76:77], 0'); i('s_load_dword s101, s[78:79], 0'); i('s_load_dword s101, s[80:81], 0')
    if o.get('xat',0)==0: xload()
    D=o['D']
    wol=[('wo',n) for n in (15,14,11,10,9,8,7,6,5,4,3,2,1,0,13,12)]
    side=[('wq',0),('wq',1),('f1',0)]+[('wq',n) for n in range(2,14)]+wol[:o['wd_pos']]+[('wd',0),('wd',1)]+wol[o['wd_pos']:]
    sidx={g:n for n,g in enumerate(side)}
    WDEND=sidx[('wd',1)]+1
    assert o['side0']>=o['D0']
    G=o['G']; NS=4*len(side)
    want={k:round(o.get('wq0',o['xat'])+k*(o['wq_end']-o.get('wq0',o['xat']))/59) for k in range(60)}
    for k in range(60,NS): want[k]=round(o['side0']+(k-60)*(o['side_end']-o['side0'])/(NS-61))
    assert want[8]>=o['D0']
    def hbase(g): return SIDE0+(sidx[g]%3)*HALF
    def dma(voff,srdn,sbase,memoff,ldsoff,tag):
        i(f's_add_u32 m0, {sRING}, {ldsoff}'); i(f's_add_u32 {sT}, {sbase}, {memoff}')
        pol=o['vpol'] if srdn==V else o['wpol']
        pol='' if pol=='def' else pol+' '
        i(f'buffer_load_dwordx4 {voff}, {srdn}, {sT} offen {pol}lds',tag=tag)
    RB=[0,16,4,20]
    def side_load(g,sl,tag):
        kind,n=g
        if kind in str(o.get('skip','')): return
        if kind=='wq': dma(vWQ,WQ,sWQ,(32*n+RB[sl])*8192,hbase(g)+sl*SLOT,tag)
        elif kind=='f1': dma(vF1,F1,sF1,(32*n+RB[sl])*3584,hbase(g)+sl*SLOT,tag)
        elif kind=='wo':
            s,e=n//2,(n%2)*4+sl
            dma(vW4,WO,sWO,(128*(s//4)+16*e+4*(s%4))*896,hbase(g)+sl*SLOT,tag)
        elif kind=='wd':
            s,e=n//2,(n%2)*4+sl
            dma(vW4,WD,sWD,(32*s+4*e)*896,hbase(g)+sl*SLOT,tag)
    def kreg(T,k):
        if T<4: return vr(32+32*T+4*k,4)
        if T<12: return ar(32*(T-4)+4*k,4)
        return ar(32*(T-12)+4*k,4)
    st=dict(sl=0,sdone=0,vdone=0,landed=-1)
    kdone=set(); unit_of={}; log=[]
    def side_ready(u): return st['sl']<NS and want[st['sl']]<=u and st['sl']//4-3<st['sdone']
    def issue_unit(u):
        kind,m=('k',u) if u<96 else ('v',u-96) if u<120 else ('k',u-24) if u<152 else ('v',u-128)
        T=m//8
        if kind=='k':
            assert T<12 or (T-8) in kdone, ('k landing busy',u)
            if m%4==0: i(f's_add_u32 {sKO}, {sKV}, {(m//4)*16384}')
            i(f'buffer_load_dwordx4 {kreg(T,m%8)}, {vK}, {K}, {sKO} offen offset:{KOFF[m%4]}'+('' if o['kpol']=='def' else ' '+o['kpol']),tag=('u',u))
        else:
            assert T-3<st['vdone'], ('v ring busy',u)
            dma(vV,V,sKV,(m//4)*16384+(m%4)*1024,(T%3)*GRP+(m%8)*SLOT,('u',u))
        if m%8==7: unit_of[(kind,T)]=u
        log.append(kind.upper())
        if u%G==G-1:
            n=0
            while side_ready(u) and n<max(G,2):
                g_=side[st['sl']//4]; side_load(g_,st['sl']%4,('u',u+1)); n+=1
                if st['sl']%4==3: unit_of[g_]=u+1
                st['sl']+=1; log.append(g_[0][-1])
    def pf_load(srdn,k,u):
        i(f's_lshr_b32 {sT}, s2, 4'); i(f's_lshl_b32 {sT}, {sT}, 2'); i(f's_add_u32 {sT}, {sT}, s3')
        if srdn==WQ:
            if k==0: i(f'v_lshrrev_b32 v25, 5, {vL}'); i('v_lshlrev_b32 v25, 13, v25'); i(f'v_and_b32 v26, 0x1ff, {vLIN}'); i(f'v_add_u32 v{OA+16}, v25, v26')
            i(f's_mul_i32 {sT}, {sT}, {7*8192}'); i(f's_lshl_b32 {sT2}, {sH}, 9'); i(f's_add_u32 {sT}, {sT}, {sT2}'); i(f's_add_u32 {sT}, {sT}, {k*16384}')
            i(f'buffer_load_dwordx4 {vr(OA+4*k,4)}, v{OA+16}, {srdn}, {sT} offen',tag=('u',u+1))
        else:
            i(f's_mul_i32 {sT}, {sT}, 3584'); i(f's_mul_i32 {sT2}, {sH}, {256*896}'); i(f's_add_u32 {sT}, {sT}, {sT2}')
            i(f'buffer_load_dwordx4 {vr(OA+4*k,4)}, {vLIN}, {srdn}, {sT} offen offset:{k*1024-(512 if k==3 else 0)}',tag=('u',u+1))
        log.append('P')
    def landed(g): return g in unit_of and unit_of[g]<=st['landed']
    for u in range(o['D0']):
        issue_unit(u)
        if u==0 and o.get('pt'): pretouch()
        if u+1==o.get('xat',0): xload()
        if o.get('pfq') and 0<=u-o['pfq']<4: pf_load(WQ,u-o['pfq'],u)
        if stamps and u==1: i('s_mov_b32 s64, s94'); i('s_mov_b32 s65, s95'); i('s_mov_b32 s66, s95'); nst[0]+=3
    srd(V,68,0x8000000); srd(WO,72,0 if o.get('nullwo') else 4096*448*2); srd(OUT,82,3584); srd(DBG,84,None); i('s_cmp_eq_u32 s3, 0'); i(f's_cselect_b32 s{srd_base(DBG)+2}, 256, 0'); srd(WSP,86,4<<20)
    i(f's_and_b32 {sT}, s2, 7'); i(f's_cmp_eq_u32 {sT}, 7'); i(f's_cselect_b32 {sCB}, 32, s2')
    i(f's_cmp_lt_u32 {sCB}, 32'); i(f's_cselect_b32 s{srd_base(WSC)+2}, {4<<20}, 0'); i(f's_cselect_b32 s{srd_base(DBGC)+2}, 256, 0')
    srd(WSC,86,None); srd(DBGC,84,None)
    fsz=448*1792*2
    i(f's_sub_u32 {sFI}, s2, 200'); i(f's_cmp_lt_u32 {sFI}, 56'); i(f's_cselect_b32 {sFI}, {sFI}, 0')
    i(f's_cselect_b32 s{srd_base(WD)+2}, {fsz}, 0'); i(f's_cselect_b32 s{srd_base(WSF)+2}, {4<<20}, 0'); i(f's_cselect_b32 s{srd_base(DBGC)+2}, 256, s{srd_base(DBGC)+2}')
    srd(WD,80,None); srd(WSF,86,None)
    i(f's_mul_i32 {sT1}, s2, 2341'); i(f's_lshr_b32 {sT1}, {sT1}, 16'); i(f's_mul_i32 {sT}, {sT1}, 28'); i(f's_sub_u32 {sT}, s2, {sT}')
    i(f's_lshl_b32 {sG1}, {sT}, 13'); i(f's_lshl_b32 {sT2}, {sT1}, 9'); i(f's_add_u32 {sG1}, {sG1}, {sT2}'); i(f's_add_u32 {sG1}, {sG1}, {G1BASE}')
    i(f's_lshl_b32 {sT2}, s3, 28'); i(f's_add_u32 {sG1}, {sG1}, {sT2}')
    i(f's_cmp_lt_u32 {sT1}, 4'); i(f's_cselect_b32 s{srd_base(F1)}, s76, s78'); i(f's_cselect_b32 s{srd_base(F1)+1}, s77, s79'); i(f's_mov_b32 s{srd_base(F1)+3}, 0x20000')
    i('s_cmp_lt_u32 s2, 224'); i(f's_cselect_b32 s{srd_base(F1)+2}, {fsz}, 0'); i(f's_cselect_b32 {sG1}, {sG1}, 0x40000000')
    i(f's_and_b32 {sT1}, {sT1}, 3'); i(f's_lshl_b32 {sT1}, {sT1}, 2'); i(f's_add_u32 {sT1}, {sT1}, s3')
    i(f's_mul_i32 {sF1}, {sT1}, {32*3584}'); i(f's_lshl_b32 {sT}, {sT}, 7'); i(f's_add_u32 {sF1}, {sF1}, {sT}')
    i(f's_min_u32 {sT1}, {sT1}, 13'); i(f's_lshl_b32 {sT1}, {sT1}, 6')
    i(f's_lshl_b32 {sT2}, s3, 8'); i(f's_mul_i32 {sWO}, {sH}, {256*896}'); i(f's_add_u32 {sWO}, {sWO}, {sT2}')
    i(f's_mul_i32 {sWD}, {sFI}, {32*896}'); i(f's_add_u32 {sWD}, {sWD}, {sT2}')
    i(f's_lshl_b32 {sY}, {sB}, 2'); i(f's_add_u32 {sY}, {sY}, s3'); i(f's_lshl_b32 {sY}, {sY}, 15')
    i(f's_lshl_b32 {sT}, {sH}, 2'); i(f's_add_u32 {sT}, {sT}, {sSP}'); i(f's_lshl_b32 {sT}, {sT}, 6'); i(f's_add_u32 {sY}, {sY}, {sT}')
    i(f's_and_b32 {sT}, s2, 31'); i(f's_lshr_b32 {sCML}, {sT}, 3'); i(f's_lshl_b32 {sT}, {sT}, 2'); i(f's_add_u32 {sT}, {sT}, s3')
    i(f's_lshl_b32 {sCY}, {sT}, 12'); i(f's_add_u32 {sCF}, {sCY}, {FBASE}')
    i(f's_lshl_b32 {sCML}, {sCML}, 9'); i(f's_add_u32 {sCML}, {sCML}, {MLBASE}')
    i(f's_mov_b32 {sC}, 0x3db8aa3b')
    i(f'v_lshrrev_b32 v25, 4, {vL}'); i(f'v_bfe_u32 v26, {vL}, 2, 2'); i(f'v_and_b32 v27, 3, {vL}')
    i(f'v_lshrrev_b32 v28, 5, {vL}'); i('v_lshlrev_b32 v28, 5, v28'); i(f'v_xor_b32 {vV}, v28, {vLIN}')
    i('v_and_b32 v28, 1, v25'); i('v_lshlrev_b32 v29, 3, v28'); i(f'v_and_b32 v30, 15, {vL}'); i('v_xor_b32 v29, v29, v30'); i('v_lshlrev_b32 v29, 4, v29')
    i(f'v_add_u32 v30, {sT2}, v29'); i('v_cmp_gt_u32 vcc, 896, v30'); i(f'v_mul_u32_u24 {vW4}, 896, v25'); i(f'v_add_u32 {vW4}, {vW4}, v29')
    i('v_bfrev_b32 v29, 1'); i(f'v_cndmask_b32 {vW4}, v29, {vW4}, vcc')
    i('v_lshl_add_u32 v29, v28, 2, v26')
    i('v_lshrrev_b32 v30, 1, v25'); i(f'v_mul_u32_u24 v30, {SLOT}, v30'); i('v_lshl_add_u32 v30, v29, 7, v30'); i('v_lshl_add_u32 v30, v27, 3, v30')
    i(f'v_add_u32 v30, {sRING}, v30'); i('v_lshrrev_b32 v29, 1, v29')
    for t in range(4):
        i(f'v_xor_b32 v31, {t}, v29'); i(f'v_lshl_add_u32 {vTW[t]}, v31, 5, v30')
    i(f'v_mul_u32_u24 v30, {SLOT}, v26'); i('v_lshl_add_u32 v30, v25, 8, v30'); i('v_lshl_add_u32 v30, v27, 3, v30'); i(f'v_add_u32 v30, {sRING}, v30')
    i('v_lshlrev_b32 v31, 7, v28'); i(f'v_add_u32 {vT4[0]}, v30, v31'); i(f'v_sub_u32 {vT4[1]}, v30, v31')
    i('v_lshrrev_b32 v30, 1, v25'); i('v_lshl_add_u32 v30, v26, 1, v30'); i(f'v_mul_u32_u24 v30, {SLOT}, v30')
    i('v_lshl_add_u32 v30, v28, 9, v30'); i('v_lshl_add_u32 v30, v27, 3, v30'); i(f'v_add_u32 v30, {sRING}, v30')
    i('v_lshlrev_b32 v31, 5, v28'); i(f'v_add_u32 {vTV[0]}, v30, v31'); i(f'v_sub_u32 {vTV[1]}, v30, v31')
    i(f'v_mul_u32_u24 {vA}, {XNROW}, v27'); i(f'v_lshl_add_u32 {vA}, v25, 4, {vA}')
    i(f'v_subrev_u32 v30, {sB}, {vL}'); i('v_and_b32 v30, 3, v30'); i(f'v_mul_u32_u24 {vA2}, {XNROW}, v30'); i(f'v_lshl_add_u32 {vA2}, v25, 4, {vA2}'); i(f'v_add_u32 {vA2}, {sT1}, {vA2}')
    i(f'v_mov_b32 {vMAX}, 0xff800000'); i(f'v_mov_b32 {vMB}, 0xff800000')
    def do_ln():
        E.wait_vm('x')
        L=192
        for k in range(4):
            i(f'v_lshlrev_b32 v{L+2*k}, 16, v{20+k}'); i(f'v_and_b32 v{L+1+2*k}, 0xffff0000, v{20+k}')
        a,b_,c_,d_,e_,f_,g_=[f'v{L+8+k}' for k in range(7)]
        i(f'v_add_f32 {a}, v{L}, v{L+1}'); i(f'v_add_f32 {b_}, v{L+2}, v{L+3}'); i(f'v_add_f32 {c_}, v{L+4}, v{L+5}'); i(f'v_add_f32 {d_}, v{L+6}, v{L+7}')
        i(f'v_add_f32 {a}, {a}, {b_}'); i(f'v_add_f32 {c_}, {c_}, {d_}'); i(f'v_add_f32 {a}, {a}, {c_}')
        allsum(a,b_)
        i(f'v_mul_f32 {a}, 0x3b124925, {a}')
        i(f'v_sub_f32 {c_}, v{L}, {a}'); i(f'v_mul_f32 {d_}, {c_}, {c_}')
        for k in range(1,8):
            i(f'v_sub_f32 {c_}, v{L+k}, {a}'); i(f'v_fmac_f32 {d_}, {c_}, {c_}')
        i(f'v_cmp_gt_u32 vcc, 56, {vL}'); i(f'v_cndmask_b32 {d_}, 0, {d_}, vcc')
        allsum(d_,b_)
        i(f'v_mul_f32 {d_}, 0x3b124925, {d_}')
        rnd(a); rnd(d_); i(f'v_add_f32 {d_}, 0x3727c5ac, {d_}'); rnd(d_); i(f'v_sqrt_f32 {d_}, {d_}'); rnd(d_); i(f'v_rcp_f32 {e_}, {d_}')
        for k in range(8): i(f'v_sub_f32 v{L+k}, v{L+k}, {a}')
        for k in range(4):
            i(f'v_cvt_pk_bf16_f32 v{20+k}, v{L+2*k}, v{L+1+2*k}')
            i(f'v_lshlrev_b32 v{L+2*k}, 16, v{20+k}'); i(f'v_and_b32 v{L+1+2*k}, 0xffff0000, v{20+k}')
        for k in range(8):
            i(f'v_mul_f32 {f_}, v{L+k}, {e_}'); i(f'v_fma_f32 {g_}, -{f_}, {d_}, v{L+k}'); i(f'v_fma_f32 v{L+k}, {g_}, {e_}, {f_}')
        for k in range(4): i(f'v_cvt_pk_bf16_f32 v{20+k}, v{L+2*k}, v{L+1+2*k}')
        i(f's_mul_i32 {sT1}, s3, {XNROW}'); i(f'v_add_u32 v24, {sT1}, {vLIN}')
        i('s_mov_b32 exec_hi, 0x00ffffff'); i(f'ds_write_b128 v24, v[20:23] offset:{XN}'); i('s_mov_b32 exec_hi, -1')
        E.wait_ds(); i('s_barrier')
    def consume_side():
        g=side[st['sdone']]; kind,n=g
        if kind in('wq','f1'):
            i(f'ds_read_b128 {vr(AT,4)}, {vA if kind=="wq" else vA2} offset:{XN+n*64}')
            for t in range(4):
                for hh in range(2): i(f'ds_read_b64_tr_b16 {vr(TT+4*t+2*hh,2)}, {vTW[t]} offset:{hbase(g)+2*hh*SLOT}',tag=('r8',t))
            for t in range(4):
                E.wait_ds(('r8',t))
                ac=QACC if kind=='wq' else OA
                i(f'v_mfma_f32_16x16x32_bf16 {vr(ac+4*t,4)}, {vr(AT,4)}, {vr(TT+4*t,4)}, {"0" if n==0 else vr(ac+4*t,4)}')
            if kind=='f1':
                i(f's_lshl_b32 {sT1}, s3, 10'); i(f'v_add_u32 v24, {sT1}, {vLIN}')
                i('s_mov_b64 exec, 0xffff')
                for t in range(4): i(f'ds_write_b128 v24, {vr(OA+4*t,4)} offset:{GU+t*256}')
                i('s_mov_b64 exec, -1')
        else:
            s,hh=n//2,n%2
            for t in range(8):
                dst=ar((s*8+t)*4+2*hh,2) if kind=='wo' else vr(TT+2*t,2)
                i(f'ds_read_b64_tr_b16 {dst}, {vT4[t//4]} offset:{hbase(g)+t*32}')
            E.wait_ds()
            if kind=='wd':
                for t in range(8):
                    acc=ar(FACC+4*t,4)
                    i(f'v_mfma_f32_16x16x16_bf16 {acc}, {vr(24+2*n,2)}, {vr(TT+2*t,2)}, {"0" if n==0 else acc}')
        st['sdone']+=1; log.append("'")
    def clears():
        if o.get('noclr'):
            i(f'buffer_store_dwordx4 v[20:23], {vLIN}, {WSC}, {sCML} offen offset:2048 {hp}',tag='clr'); return
        for r in range(4): i(f'v_mov_b32 v{20+r}, -1')
        for k in range(4): i(f'buffer_store_dwordx4 v[20:23], {vLIN}, {WSC}, {sCY} offen offset:{k*1024} {hp}',tag='clr')
        for k in range(3): i(f'buffer_store_dwordx4 v[20:23], {vLIN}, {WSC}, {sCF} offen offset:{k*1024} {hp}',tag='clr')
        i(f'v_and_b32 v24, 0x1ff, {vLIN}'); i(f's_lshl_b32 {sT1}, s3, 28'); i(f's_add_u32 {sT1}, {sT1}, {sCML}')
        i(f'buffer_store_dwordx4 v[20:23], v24, {WSC}, {sT1} offen {hp}',tag='clr')
        i(f's_lshl_b32 {sT1}, {sFI}, 2'); i(f's_add_u32 {sT1}, {sT1}, s3'); i(f's_lshl_b32 {sT1}, {sT1}, 10'); i(f's_add_u32 {sT1}, {sT1}, {G1BASE}')
        i(f'buffer_store_dwordx4 v[20:23], {vLIN}, {WSF}, {sT1} offen {hp}',tag='clr')
        i(f'v_cmp_gt_u32 vcc, 32, {vL}')
        for r in range(4): i(f'v_cndmask_b32 v{24+r}, 0, v{20+r}, vcc')
        i(f'buffer_store_dwordx4 v[24:27], {vLIN}, {WSC}, {sCF} offen offset:3072 {hp}',tag='clr')
    def do_q():
        i(f's_lshl_b32 {sT1}, s3, 7'); i(f'v_lshlrev_b32 v24, 1, {vL}'); i(f'v_add_u32 v24, {sT1}, v24')
        i(f'v_cvt_pk_bf16_f32 v20, v{QACC}, v{QACC+4}'); i(f'v_cvt_pk_bf16_f32 v21, v{QACC+8}, v{QACC+12}')
        i('s_mov_b64 exec, 0xffff')
        i(f'ds_write_b16 v24, v20 offset:{QO}'); i(f'ds_write_b16_d16_hi v24, v20 offset:{QO+32}')
        i(f'ds_write_b16 v24, v21 offset:{QO+64}'); i(f'ds_write_b16_d16_hi v24, v21 offset:{QO+96}')
        i('s_mov_b64 exec, -1')
        i(f'v_and_b32 v21, 0x1ff, {vK}')
        E.wait_ds(); i('s_barrier')
        for s in range(2): i(f'ds_read_b128 {vr(QF+4*s,4)}, v21 offset:{QO+s*256}',tag='qf')
        E.wait_ds('qf'); log.append('[q]')
    def kmm(T):
        for s in range(2):
            for a in range(4):
                acc=vr(OA+4*a,4)
                i(f'v_mfma_f32_16x16x32_bf16 {acc}, {kreg(T,2*a+s)}, {vr(QF+4*s,4)}, {"0" if s==0 else acc}')
        kdone.add(T); log.append(f'[k{T}]')
    def post(T):
        mx=vMAX if T<o['nA'] else vMB
        for a in range(4): i(f'v_mov_b32_dpp v{QG+a}, v{OA+4*a} quad_perm:[0,0,0,0] {DPP}')
        for r in range(1,4):
            for a in range(4): i(f'v_add_f32_dpp v{QG+a}, v{OA+4*a+r}, v{QG+a} quad_perm:[{r},{r},{r},{r}] {DPP}')
        i(f'v_max3_f32 {mx}, v{QG}, v{QG+1}, {mx}'); i(f'v_max3_f32 {mx}, v{QG+2}, v{QG+3}, {mx}')
        i(f'v_cvt_pk_bf16_f32 v{SC+2*T}, v{QG}, v{QG+1}'); i(f'v_cvt_pk_bf16_f32 v{SC+2*T+1}, v{QG+2}, v{QG+3}')
    def ktiles(Ts):
        for T in Ts: kmm(T); post(T)
    def fin_max(mx): xrow(mx,'v22','max'); rnd(mx); i(f'v_mul_f32 {mx}, {sC}, {mx}')
    pdone=set()
    def expA(Ts):
        regs=[SC+2*T+k for T in Ts for k in range(2)]
        for n,r in enumerate(regs):
            e=OA+2*n
            i(f'v_lshlrev_b32 v{e}, 16, v{r}'); i(f'v_and_b32 v{e+1}, 0xffff0000, v{r}')
            i(f'v_fma_f32 v{e}, v{e}, {sC}, -{vMAX}'); i(f'v_fma_f32 v{e+1}, v{e+1}, {sC}, -{vMAX}')
            i(f'v_exp_f32 v{e}, v{e}'); i(f'v_exp_f32 v{e+1}, v{e+1}')
        for n,r in enumerate(regs):
            e=OA+2*n
            if not pdone and n==0: i(f'v_pk_add_f32 v[20:21], {vr(e,2)}, 0')
            else: i(f'v_pk_add_f32 v[20:21], v[20:21], {vr(e,2)}')
            i(f'v_cvt_pk_bf16_f32 v{r}, v{e}, v{e+1}')
        pdone.update(Ts); log.append(f'[e{Ts[0]}]')
    def vtile():
        n=st['vdone']
        for t in range(16):
            i(f'ds_read_b64_tr_b16 {vr(TV+2*t,2)}, {vTV[t%2]} offset:{(n%3)*GRP+t*32}',tag=('rv',n,t))
        if n==12:
            for t in range(16): i(f'v_mul_f32 v{PV+4*t}, {sSP}, v{PV+4*t}')
        for t in range(16):
            if t%4==0: E.wait_ds(('rv',n,t+3))
            acc=vr(PV+4*t,4)
            i(f'v_mfma_f32_16x16x16_bf16 {acc}, {vr(SC+2*n,2)}, {vr(TV+2*t,2)}, {"0" if n==0 else acc}')
        st['vdone']+=1; log.append(f'[v{n}]')
    def do_atom():
        E.wait_vm('clr'); i('s_barrier')
        i('s_cmp_lg_u32 s3, 0'); i('s_cbranch_scc1 L_at')
        i('v_mov_b32 v20, 1'); i('s_mov_b64 exec, 1')
        i(f'buffer_atomic_add v20, off, {DBGC}, 0 sc1',tag='opt'); i('s_mov_b64 exec, -1')
        E.label('L_at'); log.append('[at]')
    def do_g1():
        i('s_barrier')
        for k in range(4): i(f'ds_read_b128 {vr(OA+4*k,4)}, {vLIN} offset:{GU+k*1024}',tag='gu')
        i(f'v_lshrrev_b32 v22, 5, {vL}'); i('v_lshlrev_b32 v22, 12, v22'); i(f'v_and_b32 v23, 0x1ff, {vLIN}'); i('v_add_u32 v22, v22, v23')
        E.wait_ds('gu')
        for k in (0,2): i(f'v_pk_add_f32 {vr(OA+k,2)}, {vr(OA+k,2)}, {vr(OA+4+k,2)}'); i(f'v_pk_add_f32 {vr(OA+8+k,2)}, {vr(OA+8+k,2)}, {vr(OA+12+k,2)}')
        for k in (0,2): i(f'v_pk_add_f32 {vr(OA+k,2)}, {vr(OA+k,2)}, {vr(OA+8+k,2)}')
        i(f'buffer_store_dwordx4 {vr(OA,4)}, v22, {WSP}, {sG1} offen {hp}',tag='g1'); log.append('[g1]')
    def gloads(ii):
        for k in range(4): ii(f'buffer_load_dwordx4 {vr(TT+4*k,4)}, {vLIN}, {WSF}, {sG1} offen offset:{k*1024} {hp}')
    def gg_ld():
        i(f's_lshl_b32 {sG1}, {sFI}, 12'); i(f's_add_u32 {sG1}, {sG1}, {G1BASE}')
        gloads(lambda t:i(t,tag='gg')); log.append('[gl]')
    def do_gu():
        G=TT
        E.wait_vm('gg')
        i(f's_mov_b32 {sTMO}, {TMO}')
        E.label('L_gg')
        for k in (0,2): i(f'v_pk_add_f32 {vr(G+k,2)}, {vr(G+k,2)}, {vr(G+4+k,2)}'); i(f'v_pk_add_f32 {vr(G+8+k,2)}, {vr(G+8+k,2)}, {vr(G+12+k,2)}')
        for r in range(4): i(f'v_permlane32_swap_b32 v{G+r}, v{G+8+r}')
        for k in (0,2): i(f'v_pk_add_f32 {vr(G+k,2)}, {vr(G+k,2)}, {vr(G+8+k,2)}')
        i(f'v_add_f32 v22, v{G}, v{G+1}'); i(f'v_add_f32 v23, v{G+2}, v{G+3}')
        i('v_cmp_u_f32 vcc, v22, v23'); i('s_cmp_eq_u64 vcc, 0'); i('s_cbranch_scc1 L_gg_ok')
        i(f's_sub_u32 {sTMO}, {sTMO}, 1'); i('s_cbranch_scc1 L_gg_ok')
        E.raw('    s_sleep 4'); gloads(lambda t:E.raw('    '+t)); E.raw('    s_waitcnt vmcnt(0)\n    s_branch L_gg')
        E.label('L_gg_ok')
        for r in range(4): rnd(f'v{G+r}'); i(f'v_mov_b32 v{G+4+r}, v{G+r}')
        i(f'v_and_b32 v23, 3, {vL}'); i('v_lshlrev_b32 v22, 4, v23'); i(f'v_bfe_u32 v24, {vL}, 2, 3'); i('v_lshl_add_u32 v22, v24, 1, v22')
        for r in range(4): i(f'v_permlane32_swap_b32 v{G+r}, v{G+4+r}')
        i(f's_mul_i32 {sT1}, s3, 768'); i(f'v_add_u32 v22, {sT1}, v22')
        for r in range(4): i(f'v_mul_f32 v{G+r}, v{G+r}, v{G+4+r}')
        i('v_mul_u32_u24 v23, 192, v23'); i(f'v_lshrrev_b32 v24, 4, {vL}'); i('v_lshl_add_u32 v23, v24, 4, v23'); i(f'v_add_u32 v23, {sT1}, v23')
        i(f'v_cvt_pk_bf16_f32 v{G}, v{G}, v{G+1}'); i(f'v_cvt_pk_bf16_f32 v{G+1}, v{G+2}, v{G+3}')
        i(f'ds_write_b16 v22, v{G} offset:{HO}'); i(f'ds_write_b16_d16_hi v22, v{G} offset:{HO+192}')
        i(f'ds_write_b16 v22, v{G+1} offset:{HO+384}'); i(f'ds_write_b16_d16_hi v22, v{G+1} offset:{HO+576}')
        E.wait_ds()
        i(f'ds_read_b128 v[24:27], v23 offset:{HO}')
        E.wait_ds(); log.append('[gu]')
    vYO,vFO,vML,vXO,vOW,vOA='v4','v5','v7','v9','v8','v10'
    def cnt_check():
        E.wait_vm('cnt')
        i(f's_mov_b32 {sTMO}, {TMO}')
        i('s_cmp_lg_u32 s3, 0'); i('s_cbranch_scc1 L_cnt_ok')
        E.label('L_cnt')
        i(f'v_readfirstlane_b32 {sT1}, {vCNT}'); i(f's_cmp_ge_u32 {sT1}, 84'); i('s_cbranch_scc1 L_cnt_ok')
        i(f's_sub_u32 {sTMO}, {sTMO}, 1'); i('s_cbranch_scc1 L_cnt_ok')
        E.raw(f'    s_sleep 4\n    buffer_load_dword {vCNT}, off, {DBG}, 0 sc1\n    s_waitcnt vmcnt(0)\n    s_branch L_cnt')
        E.label('L_cnt_ok')
    def do_f2():
        i(f'v_bfe_u32 v22, {vL}, 2, 2'); i(f'v_and_b32 v23, 3, {vL}'); i('v_lshlrev_b32 v23, 4, v23')
        i(f'v_lshl_add_u32 {vYO}, v22, 12, v23')
        stg=lambda r,hf: (QACC if hf==0 else TT)+4*r
        for t in range(8):
            for r in range(4): i(f'v_accvgpr_read_b32 v{stg(r,t//4)+t%4}, a{FACC+4*t+r}')
        i('s_mov_b64 exec, 0xffff')
        for r in range(4):
            i(f's_lshl_b32 {sT1}, s3, 15'); i(f's_lshl_b32 {sT2}, {sFI}, 6'); i(f's_add_u32 {sT1}, {sT1}, {sT2}'); i(f's_add_u32 {sT1}, {sT1}, {FBASE+r*131072}')
            i(f'buffer_store_dwordx4 {vr(stg(r,0),4)}, {vYO}, {WSF}, {sT1} offen {hp}',tag='fst')
            i(f's_add_u32 {sT1}, {sT1}, 16384')
            i(f'buffer_store_dwordx4 {vr(stg(r,1),4)}, {vYO}, {WSF}, {sT1} offen {hp}',tag='fst')
        i('s_mov_b64 exec, -1'); log.append('[f2]')
    def do_ml():
        fin_max(vMB); i(f'v_max_f32 {vMB}, {vMB}, {vMAX}')
        i(f'v_sub_f32 v22, {vMAX}, {vMB}'); i('v_exp_f32 v22, v22'); i('v_add_f32 v21, v20, v21'); i('v_mul_f32 v21, v21, v22')
        for n in range(8):
            r=SC+24+n; e=OA+2*n
            i(f'v_lshlrev_b32 v{e}, 16, v{r}'); i(f'v_and_b32 v{e+1}, 0xffff0000, v{r}')
            i(f'v_fma_f32 v{e}, v{e}, {sC}, -{vMB}'); i(f'v_fma_f32 v{e+1}, v{e+1}, {sC}, -{vMB}')
            i(f'v_exp_f32 v{e}, v{e}'); i(f'v_exp_f32 v{e+1}, v{e+1}')
        i('v_mov_b32 v20, 0')
        for n in range(8): i(f'v_pk_add_f32 v[20:21], v[20:21], {vr(OA+2*n,2)}')
        i('v_add_f32 v21, v20, v21'); xrow('v21','v22'); i(f'v_mov_b32 v20, {vMB}')
        i(f's_lshl_b32 {sT1}, s3, 3'); i(f'v_mov_b32 v22, {sT1}')
        i('s_mov_b64 exec, 1'); i(f'ds_write_b64 v22, v[20:21] offset:{MLO}'); i('s_mov_b64 exec, -1')
        i('v_mov_b32 v22, 0')
        E.wait_ds(); i('s_barrier')
        M=QF
        i(f'ds_read_b128 {vr(M,4)}, v22 offset:{MLO}'); i(f'ds_read_b128 {vr(M+4,4)}, v22 offset:{MLO+16}')
        E.wait_ds()
        i(f'v_max3_f32 v20, v{M}, v{M+2}, v{M+4}'); i(f'v_max_f32 v20, v20, v{M+6}')
        i(f'v_sub_f32 v22, {vMB}, v20'); i('v_exp_f32 v22, v22'); i(f'v_sub_f32 {vMAX}, {vMAX}, v20'); i(f'v_exp_f32 {vMAX}, {vMAX}')
        for k in (0,2,4,6): i(f'v_sub_f32 v{M+k}, v{M+k}, v20'); i(f'v_exp_f32 v{M+k}, v{M+k}')
        i('v_mov_b32 v23, v22'); i(f'v_readfirstlane_b32 {sSP}, {vMAX}')
        i(f'v_mul_f32 v21, v{M}, v{M+1}'); i(f'v_fmac_f32 v21, v{M+2}, v{M+3}'); i(f'v_fmac_f32 v21, v{M+4}, v{M+5}'); i(f'v_fmac_f32 v21, v{M+6}, v{M+7}')
        for n in range(8):
            i(f'v_pk_mul_f32 {vr(OA+2*n,2)}, {vr(OA+2*n,2)}, v[22:23]')
            i(f'v_cvt_pk_bf16_f32 v{SC+24+n}, v{OA+2*n}, v{OA+2*n+1}')
        i(f's_lshr_b32 {sT1}, {sKV}, 19'); i(f's_lshl_b32 {sT1}, {sT1}, 3'); i(f's_add_u32 {sT1}, {sT1}, {MLBASE}')
        i(f's_lshl_b32 {sT2}, s3, 28'); i(f's_add_u32 {sT1}, {sT1}, {sT2}')
        i('s_mov_b64 exec, 1'); i(f'buffer_store_dwordx2 v[20:21], off, {WSP}, {sT1} {hp}',tag='ml'); i('s_mov_b64 exec, -1')
        pdone.update(range(12,16)); log.append('[ml]')
    def preloads(ii):
        for k in range(4): ii(f'buffer_load_dwordx2 {vr(160+2*k,2)}, {vML}, {WSC}, {sCML} offen offset:{k*128} {hp}')
        for k in range(4): ii(f'buffer_load_dwordx4 {vr(128+4*k,4)}, {vLIN}, {WSC}, {sCF} offen offset:{k*1024} {hp}')
    def pre_ld():
        i(f'v_lshrrev_b32 {vML}, 2, {vL}'); i(f'v_lshlrev_b32 {vML}, 3, {vML}')
        i(f'v_bfe_u32 v20, {vL}, 4, 1'); i(f'v_bfe_u32 v21, {vL}, 5, 1'); i('v_lshl_add_u32 v20, v20, 1, v21')
        i(f's_and_b32 {sT1}, s2, 7'); i(f's_lshl_b32 {sT1}, {sT1}, 6'); i(f's_lshl_b32 {sT2}, s3, 2'); i(f's_add_u32 {sT1}, {sT1}, {sT2}')
        i(f's_bfe_u32 {sT2}, s2, 0x20003'); i(f's_mul_i32 {sT2}, {sT2}, 448'); i(f's_add_u32 {sT1}, {sT1}, {sT2}')
        i(f'v_and_b32 v21, 15, {vL}'); i(f'v_lshl_add_u32 {vXO}, v20, 4, v21'); i(f'v_add_u32 {vXO}, {sT1}, {vXO}'); i(f'v_lshlrev_b32 {vXO}, 1, {vXO}')
        i('v_cmp_gt_u32 vcc, 4, v21'); i('v_bfrev_b32 v20, 1'); i(f'v_cndmask_b32 {vXO}, v20, {vXO}, vcc')
        preloads(lambda t:i(t,tag='pre'))
        i(f'buffer_load_ushort v176, {vXO}, {X}, 0 offen',tag='pre')
        i(f's_mul_i32 {sT1}, s3, {ORROW}'); i(f'v_add_u32 {vOW}, {sT1}, {vLIN}')
        i(f'v_and_b32 v20, 3, {vL}'); i(f'v_mul_u32_u24 {vOA}, {ORROW}, v20'); i(f'v_lshrrev_b32 v20, 4, {vL}'); i(f'v_lshl_add_u32 {vOA}, v20, 4, {vOA}')
        i(f's_add_u32 {sT2}, {sY}, 16384'); log.append('[pl]')
    WT=178
    def pre_do():
        E.wait_vm('pre')
        i(f's_cmp_ge_u32 {sCB}, 32'); i('s_cbranch_scc1 L_pre_done')
        i(f's_mov_b32 {sTMO}, {TMO}')
        E.label('L_pre')
        for k in range(4):
            m,l=160+2*k,161+2*k
            i(f'v_max_f32_dpp v20, v{m}, v{m} row_ror:4 {DPP}'); i(f'v_max_f32_dpp v20, v20, v20 row_ror:8 {DPP}')
            i(f'v_sub_f32 v20, v{m}, v20'); i('v_exp_f32 v20, v20'); i(f'v_mul_f32 v21, v20, v{l}')
            i(f'v_add_f32_dpp v21, v21, v21 row_ror:4 {DPP}'); i(f'v_add_f32_dpp v21, v21, v21 row_ror:8 {DPP}')
            i('v_rcp_f32 v21, v21'); i(f'v_mul_f32 v{WT+k}, v20, v21')
        for r in range(4): i(f'v_add_f32 v{24+r}, v{128+r}, v{132+r}'); i(f'v_add_f32 v{28+r}, v{136+r}, v{140+r}')
        for r in range(4): i(f'v_add_f32 v{24+r}, v{24+r}, v{28+r}')
        red4(24)
        i(f'v_add_f32 v20, v{WT}, v{WT+1}'); i(f'v_add_f32 v21, v{WT+2}, v{WT+3}'); i('v_add_f32 v20, v20, v21')
        i('v_cmp_u_f32 vcc, v20, v24'); i('s_cmp_eq_u64 vcc, 0'); i('s_cbranch_scc1 L_pre_ok')
        i(f's_sub_u32 {sTMO}, {sTMO}, 1'); i('s_cbranch_scc1 L_pre_ok')
        E.raw('    s_sleep 4'); preloads(lambda t:E.raw('    '+t)); E.raw('    s_waitcnt vmcnt(0)\n    s_branch L_pre')
        E.label('L_pre_ok')
        rnd('v24'); i('v_mul_f32 v20, 0xbfb8aa3b, v24'); i('v_exp_f32 v20, v20'); i('v_add_f32 v20, 1.0, v20'); i('v_rcp_f32 v20, v20')
        i(f'v_mul_f32 v{WT+4}, v24, v20'); rnd(f'v{WT+4}'); i('v_lshlrev_b32 v176, 16, v176')
        E.label('L_pre_done')
        i('s_nop 1'); log.append('[pd]')
    fl=set()
    nA=o['nA']
    def side_consumable():
        if st['sdone']>=len(side): return False
        g=side[st['sdone']]
        if not landed(g) or 'ln' not in fl: return False
        if g[0]=='wd': return 'gu' in fl and 10 in kdone
        if g[0]=='wo':
            s_=g[1]//2
            if s_==6 and 'f2' not in fl: return False
            return s_+4 in kdone and (s_>=4 or s_+12 in kdone)
        return True
    nxt=o['D0']
    def vmidx(tag): return max(k for k,(t,_) in enumerate(E.vm) if t==tag)
    def done(tag): return vmidx(tag)<E.vm_done or (o.get('hd') and len(E.vm)-1-vmidx(tag)>=o['hd'])
    hold=0
    for w in range(G-1,256,G):
        E.wait_vm(('u',w)); st['landed']=w; log.append(' ')
        if st['sl']<NS and want[st['sl']]<=nxt and st['sl']//4-3>=st['sdone'] and side_consumable(): consume_side()
        while nxt<256 and nxt<=w+(o.get('DK',D) if nxt<o.get('DKend',128) else D):
            issue_unit(nxt)
            if o.get('pfo') and nxt>=o['pfo'] and (nxt-o['pfo'])%4==0 and nxt<o['pfo']+16: pf_load(WO,(nxt-o['pfo'])//4,nxt)
            nxt+=1
        if w<o['xat'] and not o.get('hd'): continue
        if 'ln' not in fl:
            do_ln(); fl.add('ln'); stamp()
        while side_consumable():
            consume_side()
            if st['sdone'] in (15,WDEND): break
        if w>=o['clr_at'] and 'clr' not in fl: clears(); fl.add('clr')
        if w>=o['atom_at'] and 'atom' not in fl: do_atom(); fl.add('atom')
        if w>=o['cnt_at'] and 'cl' not in fl: i(f'buffer_load_dword {vCNT}, off, {DBG}, 0 sc1',tag='cnt'); fl.add('cl')
        if w>=o['g1_at'] and 'cnt' not in fl:
            assert 'q' not in fl and st['sdone']>=3
            cnt_check(); do_g1(); fl.add('cnt')
        if st['sdone']>=15 and 'q' not in fl: do_q(); fl.add('q'); stamp()
        if w in (35,67,131,195): stamp()
        busy=False
        if 'q' in fl:
            Ts=[T for T in (4,5,6,7,8,9,10,11,0,1,2,3,12,13,14,15) if T not in kdone and landed(('k',T))][:o.get('catch',1)]
            if Ts: ktiles(Ts); busy=True
            if 'mA' not in fl and all(T in kdone for T in range(nA)): fin_max(vMAX); fl.add('mA')
        if busy: continue
        if 'mA' in fl and len(pdone)<nA:
            n=len(pdone); expA(list(range(n,min(nA,n+2)))); continue
        if st['vdone'] in pdone and landed(('v',st['vdone'])) and st['vdone']<15: vtile()
        elif w>=o['gg_at'] and 'gl' not in fl: gg_ld(); fl.add('gl')
        elif 'gl' in fl and 'gu' not in fl and done('gg'): do_gu(); fl.add('gu')
        elif st['sdone']>=WDEND and 'f2' not in fl: do_f2(); fl.add('f2'); stamp()
        elif len(kdone)==16 and len(pdone)==nA: do_ml(); stamp()
        elif w>=o['pre_ld'] and 'pl' not in fl: pre_ld(); fl.add('pl')
        elif w>=o['pre_do'] and 'pd' not in fl: pre_do(); fl.add('pd')
    assert st['sdone']==len(side) and st['vdone']==15 and 'pd' in fl, (st,fl)
    stamp()
    vtile()
    stamp()
    if o.get('verbose'): print(''.join(log))
    for k in range(8): i(f'v_cvt_pk_bf16_f32 v{128+k}, v{PV+8*k}, v{PV+8*k+4}')
    i('s_mov_b64 exec, 0xffff')
    i(f'ds_write_b128 {vOW}, v[128:131] offset:{ORO}'); i(f'ds_write_b128 {vOW}, v[132:135] offset:{ORO+256}')
    i('s_mov_b64 exec, -1')
    E.wait_ds(); i('s_barrier')
    for s in range(8): i(f'ds_read_b128 {vr(96+4*s,4)}, {vOA} offset:{ORO+s*64}',tag=('oa',s))
    for hf in range(2):
        for s in range(8):
            E.wait_ds(('oa',s))
            for t in range(4*hf,4*hf+4):
                acc=vr(FA+4*t,4)
                i(f'v_mfma_f32_16x16x32_bf16 {acc}, {vr(96+4*s,4)}, {ar((s*8+t)*4,4)}, {"0" if s==0 else acc}')
            if hf==1 and s==2:
                for t in range(4): i(f'v_pk_add_f32 {vr(FA+4*t,2)}, {vr(FA+4*t,2)}, {vr(FA+4*t+2,2)}')
            if hf==1 and s==3:
                for t in range(4): i(f'v_add_f32 v{24+t}, v{FA+4*t}, v{FA+4*t+1}')
                i('s_mov_b64 exec, 0xffff')
                i(f'buffer_store_dwordx4 v[24:27], {vYO}, {WSP}, {sY} offen {hp}',tag='y')
                i('s_mov_b64 exec, -1')
    for t in range(4,8): i(f'v_pk_add_f32 {vr(FA+4*t,2)}, {vr(FA+4*t,2)}, {vr(FA+4*t+2,2)}')
    for t in range(4,8): i(f'v_add_f32 v{24+t}, v{FA+4*t}, v{FA+4*t+1}')
    i('s_mov_b64 exec, 0xffff')
    i(f'buffer_store_dwordx4 v[28:31], {vYO}, {WSP}, {sT2} offen {hp}',tag='y')
    i('s_mov_b64 exec, -1')
    stamp()
    i(f's_cmp_ge_u32 {sCB}, 32'); i('s_cbranch_scc1 L_fin')
    i(f's_mov_b32 {sTMO}, {TMO}')
    E.label('L_poll')
    for k in range(4): i(f'buffer_load_dwordx4 {vr(128+4*k,4)}, {vLIN}, {WSC}, {sCY} offen offset:{k*1024} {hp}',tag=('yl',k))
    for k in range(4):
        E.wait_vm(('yl',k))
        for r in range(4):
            if k==0: i(f'v_mul_f32 v{144+r}, v{WT}, v{128+r}')
            else: i(f'v_fmac_f32 v{144+r}, v{WT+k}, v{128+4*k+r}')
    red4(144)
    i('v_cmp_u_f32 vcc, v144, v144'); i('s_cmp_eq_u64 vcc, 0'); i('s_cbranch_scc1 L_poll_ok')
    i(f's_sub_u32 {sTMO}, {sTMO}, 1'); i('s_cbranch_scc0 L_poll')
    E.label('L_poll_ok')
    rnd('v144'); i(f'v_mul_f32 v144, v144, v{WT+4}'); rnd('v144'); i('v_add_f32 v144, v144, v176'); i('v_cvt_pk_bf16_f32 v144, v144, v144')
    i(f'buffer_store_short v144, {vXO}, {OUT}, 0 offen')
    if 'ea' in o:
        stamp(); nst[0]-=1
        i(f's_sub_u32 {sT1}, s{64+o["eb"]}, s{64+o["ea"]}'); i(f's_min_u32 {sT1}, {sT1}, 20000'); i(f's_mov_b32 {sT2}, vcc_lo')
        E.raw(f'L_echo:\n    s_memrealtime s[100:101]\n    s_waitcnt lgkmcnt(0)\n    s_sub_u32 s100, s100, {sT2}\n    s_cmp_lt_u32 s100, {sT1}\n    s_cbranch_scc1 L_echo')
    E.label('L_fin')
    stamp()
    if stamps:
        i(f's_lshl_b32 {sT1}, s2, 2'); i(f's_add_u32 {sT1}, {sT1}, s3'); i(f's_lshl_b32 {sT1}, {sT1}, 6'); i(f's_add_u32 {sT1}, {sT1}, {STBASE}')
        i('s_mov_b64 exec, 1')
        for k in range(nst[0]):
            i(f'v_mov_b32 v20, s{64+k}'); i(f'buffer_store_dword v20, off, {WSP}, {sT1} offset:{4*k}')
        if o.get('verbose'): print('nstamps',nst[0])
    E.label('L_end')
    i('s_endpgm')
    E.raw(f'''.section .rodata,"a"
.p2align 6
.amdhsa_kernel {name}
  .amdhsa_next_free_vgpr 512
  .amdhsa_next_free_sgpr 102
  .amdhsa_accum_offset 256
  .amdhsa_group_segment_fixed_size 0
  .amdhsa_kernarg_size 96
  .amdhsa_user_sgpr_count 2
  .amdhsa_user_sgpr_kernarg_segment_ptr 1
  .amdhsa_system_sgpr_workgroup_id_x 1
  .amdhsa_float_denorm_mode_32 3
.end_amdhsa_kernel''')
    if o.get('verbose'):
        pass
    return E.text()
if __name__=='__main__':
    from mk import build
    t=gen(opts=dict(verbose=True))
    open('recurrent_scan__mha_block_cached__glu_gated_bilinear__decode.s','w').write(t)
    build(t,NAME,'main'); build(gen(stamps=True,opts=dict(verbose=True)),NAME,'main_st')
    print('lds',LDS_BYTES,'lines',t.count('\n'))
```
